```python
import torch

def _softmax(x, axis=-1):
    return torch.softmax(x, dim=axis)
def _gelu(x):
    return torch.nn.functional.gelu(x, approximate="tanh")
def _silu(x):
    return torch.nn.functional.silu(x)
def _sigmoid(x):
    return torch.sigmoid(x)
def _layernorm(x, axis=-1, eps=1e-5):
    m = x.mean(dim=axis, keepdim=True)
    v = x.var(dim=axis, keepdim=True, unbiased=False)
    return (x - m) / torch.sqrt(v + eps)
def _scatter_add(tgt, idx, src, axis=0):
    return tgt.clone().index_add_(axis, idx, src)
def _segment_sum(src, seg, n):
    out = torch.zeros((n,) + src.shape[1:], dtype=src.dtype)
    return out.index_add_(0, seg, src)
def _pad(x, pw):
    flat = tuple(v for pair in reversed(pw) for v in pair)
    return torch.nn.functional.pad(x, flat)

kernel_name = 'gated_mix__spectral_gfnet__glu_gated_geglu__prompt'

def setup_inputs():

    _w = (lambda a: (lambda t: t.to(torch.bfloat16) if t.is_floating_point() else t)(torch.as_tensor(a)))
    def _A_setup():
        B, S, D = 1, 2048, 512
        Df = D // 2 + 1
        return {
            "x": _w((lambda *s: torch.randn(*s, dtype=torch.bfloat16) * 0.05)(B, S, D)),
            "w_r": _w((lambda *s: torch.randn(*s, dtype=torch.bfloat16) * 0.05)(S, Df) * 0.02),
            "w_i": _w((lambda *s: torch.randn(*s, dtype=torch.bfloat16) * 0.05)(S, Df) * 0.02),
        }
    _A_in = _A_setup()

    def _B_setup():
        B, S, Dm, Df = 1, 2048, 512, 1792
        return {
            "x": _w((lambda *s: torch.randn(*s, dtype=torch.bfloat16) * 0.05)(B, S, Dm)),
            "w_gate": _w((lambda *s: torch.randn(*s, dtype=torch.bfloat16) * 0.2)(Dm, Df) * (Dm ** -0.5)),
            "w_up": _w((lambda *s: torch.randn(*s, dtype=torch.bfloat16) * 0.2)(Dm, Df) * (Dm ** -0.5)),
            "w_down": _w((lambda *s: torch.randn(*s, dtype=torch.bfloat16) * 0.2)(Df, Dm) * (Df ** -0.5)),
        }
    _B_in = _B_setup()

    return {
        "A_x": _A_in["x"],
        "A_w_r": _A_in["w_r"],
        "A_w_i": _A_in["w_i"],
        "B_x": _B_in["x"],
        "B_w_gate": _B_in["w_gate"],
        "B_w_up": _B_in["w_up"],
        "B_w_down": _B_in["w_down"],
        "gate_w": _w((lambda *s: torch.randn(*s, dtype=torch.bfloat16) * 0.05)(512) * 16.0),
    }

def reference(A_x, A_w_r, A_w_i, B_x, B_w_gate, B_w_up, B_w_down, gate_w):
    def _A_ref(x, w_r, w_i):
        B, S, D = x.shape
        X = (lambda x, axes=(-2,-1): torch.fft.rfft2(x.float(), dim=axes))(x, axes=(-2, -1))
        W = w_r + 1j * w_i
        X = X * W
        y = (lambda x, s, axes=(-2,-1): torch.fft.irfft2(x, s=s, dim=axes).to(torch.bfloat16))(X, (S, D), axes=(-2, -1))
        return y

    def _B_ref(x, w_gate, w_up, w_down):
        g = torch.einsum("bsd,df->bsf", x, w_gate)
        u = torch.einsum("bsd,df->bsf", x, w_up)
        h = _gelu(g) * u
        return torch.einsum("bsf,fd->bsd", h, w_down)

    x = A_x
    g = _sigmoid((x * gate_w).sum(-1, keepdims=True))
    a = _A_ref(x, A_w_r, A_w_i)
    b = _B_ref(x, B_w_gate, B_w_up, B_w_down)
    return g * a + (1 - g) * b
```

```python
import re

TRANS = ('v_exp_f32','v_log_f32','v_rcp_f32','v_rsq_f32','v_sqrt_f32','v_sin_f32','v_cos_f32')

def regs_of(tok):
    tok = tok.strip()
    tok = tok.lstrip('-')
    m = re.fullmatch(r'abs\((.*)\)', tok) or re.fullmatch(r'\|(.*)\|', tok)
    if m: tok = m.group(1)
    m = re.fullmatch(r'([vas])(\d+)', tok)
    if m: return {(m.group(1), int(m.group(2)))}
    m = re.fullmatch(r'([vas])\[(\d+):(\d+)\]', tok)
    if m: return {(m.group(1), i) for i in range(int(m.group(2)), int(m.group(3))+1)}
    if tok in ('vcc','exec','m0','scc'): return {('x', tok)}
    if tok in ('vcc_lo','vcc_hi'): return {('x','vcc')}
    if tok in ('exec_lo','exec_hi'): return {('x','exec')}
    return set()

class Ins:
    def __init__(self, text):
        self.text = text
        t = text.split(';')[0].strip()
        parts = t.split(None, 1)
        self.op = parts[0]
        rest = parts[1] if len(parts) > 1 else ''
        ops = [o.strip() for o in rest.split(',')] if rest else []
        self.mods = ''
        clean = []
        depth_join = []
        for o in ops:
            clean.append(o)
        merged = []
        for o in clean:
            if merged and merged[-1].count('[') > merged[-1].count(']'):
                merged[-1] += ',' + o
            else:
                merged.append(o)
        toks = []
        for o in merged:
            sp = o.split()
            toks.append(sp[0] if sp else '')
            if len(sp) > 1: self.mods += ' ' + ' '.join(sp[1:])
        self.toks = toks
        op = self.op
        self.cls = 'other'
        self.dst = set(); self.src = set(); self.srcC = set(); self.srcAB = set()
        self.passes = 0
        self.store_data = set()
        if op.startswith('v_mfma'):
            self.cls = 'mfma'
            self.dst = regs_of(toks[0]); self.srcAB = regs_of(toks[1]) | regs_of(toks[2]); self.srcC = regs_of(toks[3])
            self.src = self.srcAB | self.srcC
            self.passes = 8 if '32x32x16' in op else 4 if '16x16x32' in op else 16
        elif op.startswith('v_'):
            self.cls = 'trans' if op.replace('_e32','').replace('_e64','') in TRANS else 'valu'
            if op.startswith('v_cmp'):
                self.dst = regs_of(toks[0]); self.src = set().union(*[regs_of(x) for x in toks[1:]])
                if op.startswith('v_cmpx'): self.dst |= {('x','exec')}
            elif op.startswith('v_swap') or op.startswith('v_permlane'):
                self.dst = regs_of(toks[0]) | regs_of(toks[1]); self.src = set(self.dst)
            elif '_co_' in op:
                self.dst = regs_of(toks[0]) | regs_of(toks[1]); self.src = set().union(*[regs_of(x) for x in toks[2:]])
            elif op == 'v_nop':
                pass
            else:
                self.dst = regs_of(toks[0]); self.src = set().union(*[regs_of(x) for x in toks[1:]]) if len(toks) > 1 else set()
                if op.startswith('v_fmac') or op.startswith('v_pk_fmac') or op.startswith('v_writelane') or op.startswith('v_dot2c'): self.src |= self.dst
                if op.startswith('v_cndmask') and len(toks) == 3: self.src |= {('x','vcc')}
            self.dpp = ('row_' in self.mods or 'quad_perm' in self.mods or 'wave_' in self.mods or '_dpp' in op)
        elif op.startswith('buffer_') or op.startswith('global_'):
            self.cls = 'vmem'
            allr = [regs_of(x) for x in toks]
            if op in ('buffer_inv','buffer_wbl2'):
                pass
            elif 'lds' in self.mods.split() or '_lds_' in op:
                self.src = set().union(*allr) | {('x','m0')}
                self.ldsdma = True
            elif 'load' in op:
                self.dst = allr[0]; self.src = set().union(*allr[1:])
            elif op.startswith('buffer_store') or op.startswith('buffer_atomic'):
                self.src = set().union(*allr); self.store_data = allr[0]
                if 'atomic' in op and 'sc0' in self.mods: self.dst = allr[0]
            else:
                self.src = set().union(*allr); self.store_data = allr[1]
        elif op.startswith('ds_'):
            self.cls = 'ds'
            allr = [regs_of(x) for x in toks]
            if 'read' in op or 'rtn' in op or 'permute' in op or 'swizzle' in op:
                self.dst = allr[0]; self.src = set().union(*allr[1:])
            else:
                self.src = set().union(*allr)
        elif op.startswith('s_'):
            self.cls = 'salu'
            if op == 's_nop':
                self.cls = 'nop'
            elif op.startswith('s_cmp') or op.startswith('s_cbranch') or op in ('s_branch','s_barrier','s_waitcnt','s_endpgm','s_setprio','s_sleep'):
                self.src = set().union(*[regs_of(x) for x in toks]) if toks else set()
            else:
                self.dst = regs_of(toks[0]) if toks else set()
                self.src = set().union(*[regs_of(x) for x in toks[1:]]) if len(toks) > 1 else set()
                if 'saveexec' in op: self.dst |= {('x','exec')}
    def states(self):
        if self.cls == 'nop': return int(self.toks[0], 0) + 1
        return 1

def need(p, c):
    n = 0
    pv = p.cls in ('valu','trans')
    cv = c.cls in ('valu','trans')
    vec = lambda s: {r for r in s if r[0] in 'va'}
    sg = lambda s: {r for r in s if r[0] == 's' or r == ('x','vcc')}
    if pv:
        if c.cls == 'mfma' and vec(p.dst) & c.src: n = max(n, 2)
        if c.cls == 'mfma' and ('x','exec') in p.dst: n = max(n, 4)
        if p.cls == 'trans' and (c.cls == 'valu' or c.cls == 'mfma') and p.dst & c.src: n = max(n, 1)
        if c.cls == 'vmem' and sg(p.dst) & c.src: n = max(n, 5)
        if cv and sg(p.dst) & c.src:
            n = max(n, 4 if (c.op.startswith('v_readlane') or c.op.startswith('v_writelane')) else 2)
        if cv and (c.op.startswith('v_readlane') or c.op.startswith('v_readfirstlane')) and vec(p.dst) & c.src: n = max(n, 1)
        if cv and c.op.startswith('v_permlane') and vec(p.dst) & c.src: n = max(n, 2)
        if cv and getattr(c, 'dpp', False) and vec(p.dst) & c.src: n = max(n, 2)
        if cv and getattr(c, 'dpp', False) and ('x','exec') in p.dst: n = max(n, 5)
        if ('x','exec') in p.dst and cv and (c.op.startswith('v_read') or c.op.startswith('v_writelane') or c.op.startswith('v_permlane')): n = max(n, 4)
        if c.cls == 'salu' and sg(p.dst) & c.src: n = max(n, 1)
        if ('op_sel' in p.mods and not p.op.startswith('v_pk_')) or 'sdwa' in p.op or 'dst_sel' in p.mods:
            if cv and p.dst & (c.src | c.dst): n = max(n, 1)
    if p.cls == 'mfma':
        t_rw = {4: 8, 8: 12, 16: 20}[p.passes]
        if c.cls == 'mfma':
            if p.dst & c.srcAB: n = max(n, t_rw)
            if p.dst & c.srcC:
                if not (p.dst == c.srcC and p.passes == c.passes): n = max(n, {4: 6, 8: 10, 16: 18}[p.passes])
            elif p.dst & c.dst:
                n = max(n, {4: 6, 8: 10, 16: 18}[p.passes])
        elif c.cls in ('valu','trans','vmem','ds'):
            if p.dst & (c.src | c.dst): n = max(n, t_rw)
            if cv and p.srcC & c.dst: n = max(n, {4: 3, 8: 7, 16: 15}[p.passes])
    if p.cls == 'salu' and ('x','m0') in p.dst and getattr(c, 'ldsdma', False): n = max(n, 1)
    if p.cls == 'vmem' and len(p.store_data) >= 3 and (p.store_data & c.dst):
        n = max(n, 2 if cv else 1)
    if p.cls == 'ds' and p.op.startswith('ds_write') and cv and len(p.src) >= 4 and (p.src & c.dst):
        n = max(n, 2)
    return n

class Kern:
    def __init__(self):
        self.out = []
        self.hist = []
        self.vm = []
        self.lg = []
        self.nops = 0
    def raw(self, s):
        self.out.append(s)
    def label(self, name, flush=True):
        self.out.append(name + ':')
    def e(self, text, tag=None):
        for line in text.split('\n'):
            line = line.strip()
            if not line or line.startswith(';'):
                if line: self.out.append('    ' + line)
                continue
            if line.endswith(':'):
                self.out.append(line); continue
            ins = Ins(line)
            dist = 0; req = 0
            for p in reversed(self.hist):
                r = need(p, ins) - dist
                if r > req: req = r
                dist += p.states()
                if dist >= 20: break
            while req > 0:
                k = min(req, 16)
                nop = Ins(f's_nop {k-1}')
                self.out.append(f'    s_nop {k-1}'); self.hist.append(nop); req -= k; self.nops += k
            self.out.append('    ' + line)
            self.hist.append(ins)
            if len(self.hist) > 40: self.hist = self.hist[-30:]
            if ins.cls == 'vmem' and ins.op not in ('buffer_inv','buffer_wbl2'): self.vm.append(tag)
            if ins.cls == 'ds': self.lg.append(tag)
            if ins.op == 's_waitcnt':
                m = re.search(r'vmcnt\((\d+)\)', line)
                if m:
                    n = int(m.group(1)); self.vm = self.vm[len(self.vm)-n:] if n < len(self.vm) and n > 0 else ([] if n == 0 else self.vm)
                m = re.search(r'lgkmcnt\((\d+)\)', line)
                if m:
                    n = int(m.group(1)); self.lg = self.lg[len(self.lg)-n:] if n < len(self.lg) and n > 0 else ([] if n == 0 else self.lg)
    def _cnt(self, q, tags):
        if not isinstance(tags, (list, set)): tags = [tags]
        last = -1
        for i, t in enumerate(q):
            if t in tags: last = i
        if last < 0: return None
        return len(q) - 1 - last
    def wait(self, vm=None, lg=None):
        parts = []
        if vm is not None:
            n = self._cnt(self.vm, vm)
            if n is not None: parts.append(f'vmcnt({min(n,63)})')
        if lg is not None:
            n = self._cnt(self.lg, lg)
            if n is not None: parts.append(f'lgkmcnt({min(n,15)})')
        if parts: self.e('s_waitcnt ' + ' '.join(parts))
    def pad(self, n=20):
        dist = 0; req = 0
        for p in reversed(self.hist):
            w = 0
            if p.cls == 'mfma': w = {4: 8, 8: 12, 16: 20}[p.passes]
            elif p.cls in ('valu','trans'): w = 5 if any(r[0] == 's' or r[0] == 'x' for r in p.dst) else 2
            elif p.cls == 'vmem' and len(p.store_data) >= 3: w = 2
            elif p.cls == 'salu' and ('x','m0') in p.dst: w = 1
            req = max(req, w - dist)
            dist += p.states()
            if dist >= 20: break
        while req > 0:
            k = min(req, 16); self.e(f's_nop {k-1}'); req -= k
    def text(self):
        return '\n'.join(self.out) + '\n'

def vr(a, n=1, f='v'):
    return f'{f}{a}' if n == 1 else f'{f}[{a}:{a+n-1}]'
def sr(a, n=1):
    return vr(a, n, 's')

def kdesc(name, nvgpr, nsgpr=96, accum=None):
    accum = accum if accum is not None else (nvgpr + 3)//4*4
    return f'''.p2align 6
.amdhsa_kernel {name}
  .amdhsa_next_free_vgpr {nvgpr}
  .amdhsa_next_free_sgpr {nsgpr}
  .amdhsa_accum_offset {accum}
  .amdhsa_group_segment_fixed_size 0
  .amdhsa_kernarg_size 88
  .amdhsa_user_sgpr_count 2
  .amdhsa_user_sgpr_kernarg_segment_ptr 1
  .amdhsa_system_sgpr_workgroup_id_x 1
  .amdhsa_float_denorm_mode_32 3
  .amdhsa_float_denorm_mode_16_64 3
.end_amdhsa_kernel
'''
```

```python
from asmlib import *
from model import OFF_H, OFF_Y, OFF_Z, OFF_WT, OFF_WD, OFF_G, OFF_FL, WS_USED
import math, struct

def f2u(f): return struct.unpack('<I', struct.pack('<f', f))[0]

K1_LDS = 147456
XB = 49152

def gen_k1(name='k1_kernel', st_mod=''):
    k = Kern(); e = k.e
    vL = 1
    vXa, vXb, vW0, vW1 = 2, 3, 4, 5
    vXR = 6
    vWR = 14
    vT = 16
    FR = 24
    ACC = 56
    SA = 120
    vSAd = 128
    SBr = 130
    vSBd = 129
    NV = 144
    sX, sB0, sB1, sWS, sWR, sWI, sWD, sGW = 24, 28, 32, 36, 40, 44, 48, 52
    sRB, sCG, sW, sSTG, sWOFF = 56, 57, 58, 59, 60
    sXO = 64
    sM0X, sM0W = 68, 69
    k.raw(f'.globl {name}\n.p2align 8\n.type {name},@function\n{name}:')
    e(f'''
    s_cmp_ge_u32 s2, 256
    s_cbranch_scc1 K1_END
    s_load_dwordx4 s[4:7], s[0:1], 0
    s_load_dwordx2 s[8:9], s[0:1], 16
    s_load_dwordx4 s[12:15], s[0:1], 32
    s_load_dwordx4 s[16:19], s[0:1], 48
    s_load_dwordx2 s[20:21], s[0:1], 80
    s_getpc_b64 s[62:63]
    ''')
    k.raw('''    s_add_u32 s62, s62, dft_tab@rel32@lo+4
    s_addc_u32 s63, s63, dft_tab@rel32@hi+12''')
    e(f'''
    v_lshrrev_b32 v{vT}, 6, v0
    v_and_b32 v{vL}, 63, v0
    s_and_b32 s10, s2, 1
    s_lshl_b32 s10, s10, 2
    s_bfe_u32 s11, s2, 0x20003
    s_add_u32 s{sRB}, s10, s11
    s_bfe_u32 s10, s2, 0x20001
    s_lshl_b32 s10, s10, 3
    s_lshr_b32 s11, s2, 5
    s_add_u32 s{sCG}, s10, s11
    v_readfirstlane_b32 s{sW}, v{vT}
    v_lshrrev_b32 v{vT}, 4, v{vL}            ; i>>4
    v_bfe_u32 v{vT+1}, v{vL}, 3, 1           ; (i>>3)&1
    v_lshl_add_u32 v{vT+1}, v{vT+1}, 6, v{vT}   ; (i>>4) + 64*((i>>3)&1)
    v_and_b32 v{vT+2}, 7, v{vL}
    v_xor_b32 v{vT+2}, v{vT+2}, v{vT}        ; chunk
    v_lshlrev_b32 v{vT+2}, 4, v{vT+2}
    v_lshl_add_u32 v{vXa}, v{vT+1}, 10, v{vT+2}
    v_xor_b32 v{vXb}, 64, v{vXa}
    s_lshr_b32 s10, s{sRB}, 2
    s_lshl_b32 s10, s10, 14
    s_and_b32 s11, s{sRB}, 3
    s_lshl_b32 s11, s11, 19
    s_add_u32 s10, s10, s11
    s_lshr_b32 s11, s{sW}, 1
    s_lshl_b32 s11, s11, 17
    s_add_u32 s10, s10, s11
    s_and_b32 s11, s{sW}, 1
    s_lshl_b32 s11, s11, 15
    s_add_u32 s{sXO}, s10, s11
    s_add_u32 s{sXO+1}, s{sXO}, 4096
    s_add_u32 s{sXO+2}, s{sXO}, 8192
    s_add_u32 s{sXO+3}, s{sXO}, 12288
    s_lshl_b32 s10, s{sW}, 12
    s_add_u32 s{sM0X}, s10, {XB}
    s_lshl_b32 s{sM0W}, s{sW}, 10
    s_movk_i32 s70, 3584
    s_mov_b32 s{sB0+2}, 1835008
    s_cmp_ge_u32 s{sCG}, 28
    s_cselect_b32 s70, 512, s70
    s_cselect_b32 s71, 28, 0
    s_cselect_b32 s{sB0+2}, 262144, s{sB0+2}
    s_mov_b32 s{sB1+2}, s{sB0+2}
    s_sub_u32 s71, s{sCG}, s71
    s_lshl_b32 s71, s71, 7
    s_lshl_b32 s{sSTG}, s70, 6
    s_add_u32 s72, s62, 262144
    s_addc_u32 s73, s63, 0
    v_lshrrev_b32 v{vT+1}, 3, v{vL}
    s_lshl_b32 s10, s{sW}, 3
    v_add_u32 v{vT+1}, s10, v{vT+1}
    v_mul_lo_u32 v{vT+1}, v{vT+1}, s70
    v_bfe_u32 v{vT+2}, v{vL}, 1, 2           ; unit' = (i&7)>>1
    v_and_b32 v{vT+3}, 1, v{vT}              ; (i>>4)&1
    v_xor_b32 v{vT+2}, v{vT+2}, v{vT+3}
    v_lshlrev_b32 v{vT+2}, 5, v{vT+2}
    v_and_b32 v{vT+3}, 1, v{vL}
    v_lshl_add_u32 v{vT+2}, v{vT+3}, 4, v{vT+2}
    v_xor_b32 v{vT+3}, 64, v{vT+2}
    v_add3_u32 v{vW0}, v{vT+1}, v{vT+2}, s71
    v_add3_u32 v{vW1}, v{vT+1}, v{vT+3}, s71
    s_mov_b32 s{sWOFF}, 0
    s_mov_b32 s{sX+2}, 2097152
    s_mov_b32 s{sX+3}, 0x20000
    s_mov_b32 s{sB0+3}, 0x20000
    s_mov_b32 s{sB1+3}, 0x20000
    s_waitcnt lgkmcnt(0)
    s_mov_b32 s{sX}, s4
    s_mov_b32 s{sX+1}, s5
    s_cmp_ge_u32 s{sCG}, 28
    s_cselect_b32 s{sB0}, s62, s12
    s_cselect_b32 s{sB0+1}, s63, s13
    s_cselect_b32 s{sB1}, s72, s14
    s_cselect_b32 s{sB1+1}, s73, s15
    ''')
    def dma(stage, idx):
        slot = stage % 3
        if idx < 2:
            e(f's_add_u32 m0, s{sM0W}, {slot*16384 + idx*8192}')
            e(f'buffer_load_dwordx4 v{vW0+idx}, s[{(sB0,sB1)[idx]}:{(sB0,sB1)[idx]+3}], s{sWOFF} offen lds', tag=('st', stage))
            if idx == 1: e(f's_add_u32 s{sWOFF}, s{sWOFF}, s{sSTG}')
        else:
            q = idx - 2
            imm = slot*32768 + q*1024 - 128*stage
            if imm >= 0: e(f's_add_u32 m0, s{sM0X}, {imm}')
            else: e(f's_sub_u32 m0, s{sM0X}, {-imm}')
            off = f' offset:{128*stage}' if stage else ''
            e(f'buffer_load_dwordx4 v{(vXa,vXb)[q&1]}, s[{sX}:{sX+3}], s{sXO+q} offen{off} lds', tag=('st', stage))
    for st in range(3):
        for i in range(6): dma(st, i)
    e(f'''
    v_and_b32 v{vT}, 31, v{vL}               ; n
    v_lshrrev_b32 v{vT+1}, 5, v{vL}          ; hh
    v_bfe_u32 v{vT+2}, v{vL}, 1, 3           ; (n>>1)&7
    v_xor_b32 v{vT+1}, v{vT+1}, v{vT+2}
    v_lshlrev_b32 v{vT+1}, 4, v{vT+1}
    v_lshl_add_u32 v{vT+1}, v{vT}, 7, v{vT+1}
    s_lshr_b32 s10, s{sW}, 1
    s_lshl_b32 s10, s10, 13
    s_add_u32 s10, s10, {XB}
    v_add_u32 v{vXR}, s10, v{vT+1}
    v_xor_b32 v{vXR+1}, 32, v{vXR}
    v_xor_b32 v{vXR+2}, 64, v{vXR}
    v_xor_b32 v{vXR+3}, 96, v{vXR}
    v_add_u32 v{vXR+4}, 0x10000, v{vXR}
    v_add_u32 v{vXR+5}, 0x10000, v{vXR+1}
    v_add_u32 v{vXR+6}, 0x10000, v{vXR+2}
    v_add_u32 v{vXR+7}, 0x10000, v{vXR+3}
    v_bfe_u32 v{vT}, v{vL}, 4, 1             ; isup
    v_lshrrev_b32 v{vT+1}, 5, v{vL}          ; hh
    v_bfe_u32 v{vT+2}, v{vL}, 2, 2           ; r4
    v_lshl_add_u32 v{vT+1}, v{vT+1}, 3, v{vT+2}  ; 8hh + r4
    v_lshlrev_b32 v{vT+1}, 7, v{vT+1}
    v_lshl_add_u32 v{vT+1}, v{vT}, 13, v{vT+1}   ; + isup*8192
    v_bfe_u32 v{vT+2}, v{vL}, 3, 1           ; (r4>>1)&1
    v_lshl_or_b32 v{vT+2}, v{vT}, 1, v{vT+2}
    s_and_b32 s10, s{sW}, 1
    s_lshl_b32 s10, s10, 1
    v_xor_b32 v{vT+2}, s10, v{vT+2}
    v_lshl_add_u32 v{vT+1}, v{vT+2}, 5, v{vT+1}
    v_and_b32 v{vT+2}, 1, v{vL}
    v_lshl_add_u32 v{vT+1}, v{vT+2}, 4, v{vT+1}  ; (c&1)*16
    v_bfe_u32 v{vT+2}, v{vL}, 1, 1
    v_lshl_add_u32 v{vWR}, v{vT+2}, 3, v{vT+1}   ; (c>>1)*8
    v_xor_b32 v{vWR+1}, 32, v{vWR}
    s_mov_b32 s{sWS}, s20
    s_mov_b32 s{sWS+1}, s21
    s_mov_b32 s{sWS+2}, {WS_USED}
    s_mov_b32 s{sWS+3}, 0x20000
    s_mov_b32 s{sWR}, s6
    s_mov_b32 s{sWR+1}, s7
    s_mov_b32 s{sWR+2}, 1052672
    s_mov_b32 s{sWR+3}, 0x20000
    s_mov_b32 s{sWI}, s8
    s_mov_b32 s{sWI+1}, s9
    s_mov_b32 s{sWI+2}, 1052672
    s_mov_b32 s{sWI+3}, 0x20000
    s_mov_b32 s{sWD}, s16
    s_mov_b32 s{sWD+1}, s17
    s_mov_b32 s{sWD+2}, 1835008
    s_mov_b32 s{sWD+3}, 0x20000
    s_mov_b32 s{sGW}, s18
    s_mov_b32 s{sGW+1}, s19
    s_mov_b32 s{sGW+2}, 1024
    s_mov_b32 s{sGW+3}, 0x20000
    ''')
    def reads(T):
        st, ks = T >> 2, T & 3
        slot = st % 3; b = FR + 16*(T & 1)
        for jj in range(2):
            o = slot*16384 + ks*2048
            e(f'ds_read_b64_tr_b16 {vr(b+8+4*jj,2)}, v{vWR+jj} offset:{o}', tag=('fr', T))
            e(f'ds_read_b64_tr_b16 {vr(b+10+4*jj,2)}, v{vWR+jj} offset:{o+512}', tag=('fr', T))
            ee = jj
            a = vXR + ks + (4 if slot == 2 else 0)
            o = (slot*32768 if slot < 2 else 0) + ee*4096
            e(f'ds_read_b128 {vr(b+4*ee,4)}, v{a} offset:{o}', tag=('fr', T))
    def mfma(T, jj, ee):
        b = FR + 16*(T & 1); a = ACC + 32*jj + 16*ee
        c = '0' if T == 0 else vr(a, 16)
        e(f'v_mfma_f32_32x32x16_bf16 {vr(a,16)}, {vr(b+8+4*jj,4)}, {vr(b+4*ee,4)}, {c}')
    def side_loads():
        e(f'''
        s_bfe_u32 s10, s2, 0x10002            ; mhalf
        s_lshl_b32 s10, s10, 3
        s_add_u32 s10, s10, s{sW}             ; m
        s_lshr_b32 s11, s2, 6                 ; w2
        s_lshl_b32 s11, s11, 4
        s_add_u32 s10, s10, s11               ; j2
        s_bfe_u32 s11, s2, 0x30003            ; tile*4+g
        s_lshl_b32 s11, s11, 8                ; 64*(16tile+4g)
        s_add_u32 s10, s10, s11               ; j
        s_mul_i32 s10, s10, 514
        s_and_b32 s11, s2, 3
        s_lshl_b32 s74, s11, 7
        s_add_u32 s10, s10, s74
        v_lshlrev_b32 v{vT}, 1, v{vL}
        s_lshl_b32 s11, s11, 19               ; cq*64*8192
        s_lshr_b32 s74, s2, 2
        s_lshl_b32 s74, s74, 7
        s_add_u32 s11, s11, s74
        s_lshl_b32 s74, s{sW}, 4
        s_add_u32 s11, s11, s74
        s_add_u32 s11, s11, {OFF_WT}
        v_lshlrev_b32 v{vSAd}, 13, v{vL}
        v_add_u32 v{vSAd}, s11, v{vSAd}
        v_lshlrev_b32 v{vSBd}, 4, v{vL}
        ''')
        for r in range(4):
            e(f'buffer_load_ushort v{SA+r}, v{vT}, s[{sWR}:{sWR+3}], s10 offen', tag='side')
            e(f'buffer_load_ushort v{SA+4+r}, v{vT}, s[{sWI}:{sWI+3}], s10 offen', tag='side')
            if r < 3: e(f's_add_u32 s10, s10, 32896')
        e(f'''
        s_cmp_ge_u32 s{sW}, 4
        s_cbranch_scc1 K1_SL_C
        s_lshl_b32 s10, s{sW}, 5
        s_lshr_b32 s11, s2, 3
        s_add_u32 s10, s10, s11
        s_and_b32 s11, s2, 7
        s_mul_i32 s74, s11, 112
        s_add_u32 s74, s74, s10
        s_lshl_b32 s74, s74, 11
        s_add_u32 s74, s74, {OFF_WD}
        s_cmp_ge_u32 s10, 112
        s_cselect_b32 s74, {WS_USED}, s74
        v_add_u32 v{vSBd}, s74, v{vSBd}
        s_lshl_b32 s10, s10, 14
        s_lshl_b32 s11, s11, 7
        s_add_u32 s10, s10, s11
        s_add_u32 s11, s10, 4096
        v_lshrrev_b32 v{vT}, 5, v{vL}
        v_lshlrev_b32 v{vT}, 13, v{vT}
        v_bfe_u32 v{vT+1}, v{vL}, 2, 1
        v_lshl_add_u32 v{vT}, v{vT+1}, 6, v{vT}
        v_bfe_u32 v{vT+1}, v{vL}, 3, 2
        v_lshl_add_u32 v{vT}, v{vT+1}, 4, v{vT}
        v_and_b32 v{vT+1}, 3, v{vL}
        v_lshl_add_u32 v{vT}, v{vT+1}, 2, v{vT}
        ''')
        for j in range(8):
            e(f'buffer_load_dword v{SBr+j}, v{vT}, s[{sWD}:{sWD+3}], s{10 + (j>>2)} offen offset:{(j&3)*1024}', tag='side')
        e(f'''
        s_branch K1_SL_DONE
        K1_SL_C:
        s_lshl_b32 s10, s2, 3
        s_sub_u32 s11, s{sW}, 4
        s_lshl_b32 s11, s11, 1
        s_add_u32 s75, s10, s11               ; p
        s_lshr_b32 s10, s75, 10
        s_lshl_b32 s10, s10, 4
        s_bfe_u32 s11, s75, 0x40002
        s_add_u32 s10, s10, s11               ; 16tile + m
        s_bfe_u32 s11, s75, 0x40006           ; 4t+g
        s_lshl_b32 s11, s11, 7
        s_add_u32 s10, s10, s11
        s_and_b32 s11, s75, 3
        s_lshl_b32 s11, s11, 5
        s_add_u32 s10, s10, s11               ; s
        s_lshl_b32 s10, s10, 10
        s_add_u32 s11, s10, 32768
        v_lshlrev_b32 v{vT}, 4, v{vL}
        buffer_load_dwordx4 {vr(SBr,4)}, v{vT}, s[{sX}:{sX+3}], s10 offen
        buffer_load_dwordx4 {vr(SBr+4,4)}, v{vT}, s[{sX}:{sX+3}], s11 offen
        buffer_load_dwordx4 {vr(SBr+8,4)}, v{vT}, s[{sGW}:{sGW+3}], 0 offen
        K1_SL_DONE:
        ''')
    k.wait(vm=('st', 0)); e('s_barrier')
    reads(0)
    pend = []
    for T in range(32):
        st, ks = T >> 2, T & 3
        if ks == 3 and st < 7:
            e('s_waitcnt lgkmcnt(0)')
            k.wait(vm=('st', st+1)); e('s_barrier')
            if st + 3 < 8: pend = [(st+3, i) for i in range(6)]
        if T < 31: reads(T+1)
        k.wait(lg=('fr', T))
        mfma(T, 0, 0)
        if pend: dma(*pend.pop(0))
        mfma(T, 1, 0)
        mfma(T, 0, 1)
        if pend: dma(*pend.pop(0))
        mfma(T, 1, 1)
        if T == 27: side_loads()
    k.vm = []
    e(f's_cmp_ge_u32 s{sCG}, 28')
    e('s_cbranch_scc1 K1_EP_DFT')
    c0 = -2*math.sqrt(2/math.pi)*math.log2(math.e); c1 = c0*0.044715
    vC0, vC1, vONE = 16, 18, 20
    vHA = 22
    e(f'''
    v_mov_b32 v{vC0}, {f2u(c0):#x}
    v_mov_b32 v{vC0+1}, {f2u(c0):#x}
    v_mov_b32 v{vC1}, {f2u(c1):#x}
    v_mov_b32 v{vC1+1}, {f2u(c1):#x}
    v_mov_b32 v{vONE}, 1.0
    v_mov_b32 v{vONE+1}, 1.0
    s_lshl_b32 s10, s{sRB}, 2
    s_lshr_b32 s11, s{sW}, 1
    s_add_u32 s10, s10, s11
    s_mul_i32 s10, s10, 112
    s_lshl_b32 s11, s{sCG}, 2
    s_add_u32 s10, s10, s11
    s_and_b32 s11, s{sW}, 1
    s_lshl_b32 s11, s11, 1
    s_add_u32 s10, s10, s11
    s_lshl_b32 s10, s10, 11
    v_lshlrev_b32 v{vHA}, 4, v{vL}
    ''')
    for ti, (jj, ee) in enumerate([(0,0),(1,0),(0,1),(1,1)]):
        a = ACC + 32*jj + 16*ee
        t = FR + 16*(ti & 1)
        P = lambda r: vr(r, 2)
        for i in range(0, 8, 2): e(f'v_pk_mul_f32 {P(t+i)}, {P(a+i)}, {P(a+i)}')
        for i in range(0, 8, 2): e(f'v_pk_fma_f32 {P(t+i)}, {P(t+i)}, {P(vC1)}, {P(vC0)}')
        for i in range(0, 8, 2): e(f'v_pk_mul_f32 {P(t+i)}, {P(t+i)}, {P(a+i)}')
        for i in range(8): e(f'v_exp_f32 v{t+i}, v{t+i}')
        for i in range(0, 8, 2): e(f'v_pk_mul_f32 {P(a+i)}, {P(a+i)}, {P(a+8+i)}')
        for i in range(0, 8, 2): e(f'v_pk_add_f32 {P(t+i)}, {P(t+i)}, {P(vONE)}')
        for i in range(8): e(f'v_rcp_f32 v{t+i}, v{t+i}')
        for i in range(0, 8, 2): e(f'v_pk_mul_f32 {P(a+i)}, {P(a+i)}, {P(t+i)}')
        for i in range(0, 8, 2): e(f'v_cvt_pk_bf16_f32 v{t+8+i//2}, v{a+i}, v{a+i+1}')
        e(f'buffer_store_dwordx4 {vr(t+8,4)}, v{vHA}, s[{sWS}:{sWS+3}], s10 offen offset:{jj*2048+ee*1024}{st_mod}')
    e('s_waitcnt vmcnt(4)')
    e('s_branch K1_SIDE')
    k.raw('K1_EP_DFT:')
    e('s_nop 10')
    e(f'''
    s_sub_u32 s10, s{sCG}, 28
    s_lshl_b32 s10, s10, 1
    s_and_b32 s11, s{sW}, 1
    s_add_u32 s10, s10, s11
    s_lshl_b32 s10, s10, 18
    s_lshl_b32 s11, s{sRB}, 10
    s_add_u32 s10, s10, s11
    s_lshr_b32 s11, s{sW}, 1
    s_lshl_b32 s11, s11, 8
    s_add_u32 s10, s10, s11
    s_add_u32 s10, s10, {OFF_Y}
    v_lshrrev_b32 v{vT}, 5, v{vL}
    v_lshlrev_b32 v{vT}, 16, v{vT}
    v_and_b32 v{vT+1}, 31, v{vL}
    v_lshl_add_u32 v{vT}, v{vT+1}, 3, v{vT}
    ''')
    for jj in range(2):
        for r in range(8):
            t = FR + 2*(jj*8 + r)
            for ee in range(2):
                a = ACC + 32*jj + 16*ee
                e(f'v_cvt_pk_bf16_f32 v{t+ee}, v{a+r}, v{a+8+r}')
            e(f'buffer_store_dwordx2 {vr(t,2)}, v{vT}, s[{sWS}:{sWS+3}], s10 offen{st_mod}')
            e(f's_add_u32 s10, s10, {8192 if r < 7 else 8192*9}')
    e(f'''
    s_cmp_lg_u32 s2, 255
    s_cbranch_scc1 K1_NOA2
    ; j = 16(w>>1) + m + 64(16(w&1) + 4g + r)
    s_lshr_b32 s10, s{sW}, 1
    s_lshl_b32 s10, s10, 4
    s_and_b32 s11, s{sW}, 1
    s_lshl_b32 s11, s11, 10
    s_add_u32 s10, s10, s11
    s_mul_i32 s10, s10, 514
    s_add_u32 s10, s10, 512
    v_lshrrev_b32 v{vT}, 4, v{vL}
    v_and_b32 v{vT+1}, 15, v{vL}
    v_lshl_add_u32 v{vT}, v{vT}, 8, v{vT+1}
    v_mul_u32_u24 v{vT}, 514, v{vT}
    ''')
    for r in range(4):
        e(f'buffer_load_ushort v{ACC+r}, v{vT}, s[{sWR}:{sWR+3}], s10 offen')
        e(f'buffer_load_ushort v{ACC+4+r}, v{vT}, s[{sWI}:{sWI+3}], s10 offen')
        if r < 3: e(f's_add_u32 s10, s10, 32896')
    e(f'''
    s_lshl_b32 s10, s{sW}, 10
    s_add_u32 s10, s10, {OFF_WT + 256*8192}
    v_lshlrev_b32 v{vT}, 4, v{vL}
    s_waitcnt vmcnt(0)
    ''')
    for r in range(4): e(f'v_lshl_or_b32 v{ACC+r}, v{ACC+4+r}, 16, v{ACC+r}')
    e(f'buffer_store_dwordx4 {vr(ACC,4)}, v{vT}, s[{sWS}:{sWS+3}], s10 offen{st_mod}')
    e('K1_NOA2:')
    e('s_waitcnt vmcnt(16)')
    k.raw('K1_SIDE:')
    for r in range(4): e(f'v_lshl_or_b32 v{SA+r}, v{SA+4+r}, 16, v{SA+r}')
    e(f'buffer_store_dwordx4 {vr(SA,4)}, v{vSAd}, s[{sWS}:{sWS+3}], 0 offen{st_mod}')
    e(f'''
    s_cmp_ge_u32 s{sW}, 4
    s_cbranch_scc1 K1_SF_C
    s_mov_b32 s10, 0x05040100
    s_mov_b32 s11, 0x07060302
    ''')
    o = ACC + 16
    for q in range(4):
        e(f'v_perm_b32 v{o+q}, v{SBr+2*q+1}, v{SBr+2*q}, s10')
        e(f'v_perm_b32 v{o+4+q}, v{SBr+2*q+1}, v{SBr+2*q}, s11')
    e(f'buffer_store_dwordx4 {vr(o,4)}, v{vSBd}, s[{sWS}:{sWS+3}], 0 offen{st_mod}')
    e(f'buffer_store_dwordx4 {vr(o+4,4)}, v{vSBd}, s[{sWS}:{sWS+3}], 0 offen offset:1024{st_mod}')
    e('s_endpgm')
    k.raw('K1_SF_C:')
    u = ACC + 16
    for q in range(4):
        e(f'v_lshlrev_b32 v{u+2*q}, 16, v{SBr+8+q}')
        e(f'v_and_b32 v{u+2*q+1}, 0xffff0000, v{SBr+8+q}')
    for row in range(2):
        sacc = u + 10 + row
        for q in range(4):
            e(f'v_lshlrev_b32 v{u+8}, 16, v{SBr+4*row+q}')
            e(f'v_and_b32 v{u+9}, 0xffff0000, v{SBr+4*row+q}')
            if q == 0: e(f'v_mul_f32 v{sacc}, v{u+8}, v{u+2*q}')
            else: e(f'v_fmac_f32 v{sacc}, v{u+8}, v{u+2*q}')
            e(f'v_fmac_f32 v{sacc}, v{u+9}, v{u+2*q+1}')
    for mod in ('quad_perm:[1,0,3,2]', 'quad_perm:[2,3,0,1]', 'row_half_mirror', 'row_mirror'):
        for row in range(2):
            sacc = u + 10 + row
            e(f'v_add_f32_dpp v{sacc}, v{sacc}, v{sacc} {mod} row_mask:0xf bank_mask:0xf')
    for row in range(2):
        sacc = u + 10 + row
        for q in range(1, 4): e(f'v_readlane_b32 s{80+4*row+q}, v{sacc}, {16*q}')
    for q in range(1, 4):
        for row in range(2):
            sacc = u + 10 + row
            e(f'v_add_f32 v{sacc}, s{80+4*row+q}, v{sacc}')
    for row in range(2): e(f'v_mul_f32 v{u+10+row}, {f2u(-math.log2(math.e)):#x}, v{u+10+row}')
    for row in range(2): e(f'v_exp_f32 v{u+10+row}, v{u+10+row}')
    for row in range(2): e(f'v_add_f32 v{u+10+row}, 1.0, v{u+10+row}')
    for row in range(2): e(f'v_rcp_f32 v{u+10+row}, v{u+10+row}')
    e(f'''
    s_lshl_b32 s10, s75, 2
    s_add_u32 s10, s10, {OFF_G}
    s_lshl_b32 s11, s2, 6
    s_add_u32 s11, s11, {OFF_FL}
    v_mov_b32 v{u}, 0
    v_cmp_eq_u32 vcc, 0, v{vL}
    s_and_saveexec_b64 s[76:77], vcc
    buffer_store_dwordx2 {vr(u+10,2)}, v{u}, s[{sWS}:{sWS+3}], s10 offen{st_mod}
    buffer_store_dword v{u}, v{u}, s[{sWS}:{sWS+3}], s11 offen{st_mod}
    K1_END:
    s_endpgm
    ''')
    return k.text(), kdesc(name, NV, 96)

def gen_table():
    import numpy as np
    from model import f32_to_bf16
    c = f32_to_bf16(np.cos(2*np.pi*np.arange(512)/512).astype(np.float32))
    c[128] = 0; c[384] = 0
    L = []
    for i in range(512): L.append(f'.set tc{i}, {int(c[i]):#x}')
    L.append('''.altmacro
.macro TE i
.short tc\\i
.endm
.p2align 8
.type dft_tab,@object
dft_tab:
.set td, 0
.rept 512
.set tk, 0
.rept 256
TE %(tk & 511)
.set tk, tk + td
.endr
.set td, td + 1
.endr
.set td, 0
.rept 512
TE %((td & 1) * 256)
.set tk, td + 128
.rept 255
TE %(tk & 511)
.set tk, tk + td
.endr
.set td, td + 1
.endr
.size dft_tab, 524288
.noaltmacro''')
    return '\n'.join(L) + '\n'
```

```python
from asmlib import *
from model import OFF_H, OFF_Y, OFF_Z, OFF_WT, OFF_WD, OFF_G, OFF_FL, WS_USED
import math, struct
def f2u(f): return struct.unpack('<I', struct.pack('<f', f))[0]
def fl(f):
    inl = {0.0:'0', 0.5:'0.5', 1.0:'1.0', 2.0:'2.0', 4.0:'4.0'}
    return inl.get(f, f'{f2u(f):#x}')

L_EX = 131072
L_CNT = L_EX + 16384
K2_LDS = L_CNT + 64

def gen_k2(name, mode, depth=7):
    k = Kern(); e = k.e
    N = name.upper().replace('_KERNEL','')
    vL, vLO = 1, 2
    vT = 4
    sWS, sOUT = 24, 28
    sW, sMT, sNT, sWA = 32, 33, 34, 35
    sc1 = ' sc1' if mode == 'merged' else ''
    exb = L_EX if mode != 'fft' else 0
    k.raw(f'.globl {name}\n.p2align 8\n.type {name},@function\n{name}:')
    e(f'''
    s_cmp_ge_u32 s2, 256
    s_cbranch_scc1 {N}_END
    s_load_dwordx2 s[4:5], s[0:1], 64
    s_load_dwordx2 s[6:7], s[0:1], 80
    v_lshrrev_b32 v{vT}, 6, v0
    v_and_b32 v{vL}, 63, v0
    s_and_b32 s10, s2, 7
    s_lshl_b32 s10, s10, 2
    s_bfe_u32 s11, s2, 0x20003
    s_add_u32 s{sMT}, s10, s11
    s_lshr_b32 s{sNT}, s2, 5
    v_readfirstlane_b32 s{sW}, v{vT}
    v_lshlrev_b32 v{vLO}, 4, v{vL}
    s_mov_b32 s{sWS+2}, {WS_USED}
    s_mov_b32 s{sWS+3}, 0x20000
    s_mov_b32 s{sOUT+2}, 2097152
    s_mov_b32 s{sOUT+3}, 0x20000
    s_and_b32 s{sWA}, s{sW}, 3
    s_waitcnt lgkmcnt(0)
    s_mov_b32 s{sWS}, s6
    s_mov_b32 s{sWS+1}, s7
    s_mov_b32 s{sOUT}, s4
    s_mov_b32 s{sOUT+1}, s5
    ''')
    ACC = 16
    vG = 80
    def load_g():
        e(f'''
        v_and_b32 v{vT}, 31, v{vL}
        v_lshlrev_b32 v{vT}, 3, v{vT}
        s_lshl_b32 s10, s{sMT}, 8
        s_add_u32 s10, s10, {OFF_G}
        ''')
        e(f'buffer_load_dwordx2 {vr(vG,2)}, v{vT}, s[{sWS}:{sWS+3}], s10 offen', tag='g')
    if mode != 'fft':
        e(f's_cmp_ge_u32 s{sW}, 4')
        e(f's_cbranch_scc1 {N}_A')
        RING = 84
        sH, sD = 40, 41
        e(f'''
        s_setprio 1
        s_mul_i32 s10, s{sWA}, 28
        s_mul_i32 s{sH}, s{sMT}, 112
        s_add_u32 s{sH}, s{sH}, s10
        s_lshl_b32 s{sH}, s{sH}, 11
        s_mul_i32 s{sD}, s{sNT}, 112
        s_add_u32 s{sD}, s{sD}, s10
        s_lshl_b32 s{sD}, s{sD}, 11
        s_add_u32 s{sD}, s{sD}, {OFF_WD}
        ''')
        def ld(s):
            r = RING + 16*(s % depth); o = 2048*(s & 1)
            e(f'buffer_load_dwordx4 {vr(r,4)}, v{vLO}, s[{sWS}:{sWS+3}], s{sD} offen offset:{o}', tag=('s', s))
            e(f'buffer_load_dwordx4 {vr(r+8,4)}, v{vLO}, s[{sWS}:{sWS+3}], s{sH} offen offset:{o}', tag=('s', s))
            e(f'buffer_load_dwordx4 {vr(r+12,4)}, v{vLO}, s[{sWS}:{sWS+3}], s{sH} offen offset:{o+1024}', tag=('s', s))
            e(f'buffer_load_dwordx4 {vr(r+4,4)}, v{vLO}, s[{sWS}:{sWS+3}], s{sD} offen offset:{o+1024}', tag=('s', s))
            if s & 1:
                e(f's_add_u32 s{sH}, s{sH}, 4096')
                e(f's_add_u32 s{sD}, s{sD}, 4096')
        ld(0); ld(1)
        if mode == 'merged': e('s_barrier')
        for s in range(2, depth-1): ld(s)
        for s in range(28):
            if s + depth - 1 < 28: ld(s + depth - 1)
            if s + depth - 1 == 28: load_g()
            k.wait(vm=('s', s))
            r = RING + 16*(s % depth)
            for dt, ee in ((0,0),(0,1),(1,1),(1,0)):
                a = ACC + 32*dt + 16*ee
                e(f'v_mfma_f32_32x32x16_bf16 {vr(a,16)}, {vr(r+4*dt,4)}, {vr(r+8+4*ee,4)}, {"0" if s == 0 else vr(a,16)}')
        k.wait(vm='g')
        e(f'v_sub_f32 v{vG}, 1.0, v{vG}')
        e(f'v_sub_f32 v{vG+1}, 1.0, v{vG+1}')
        k.pad()
        e(f's_branch {N}_RED')
        k.raw(f'{N}_A:')
        k.vm = []; k.lg = []
    if mode != 'g2':
        DY = 84
        WT = 116
        FA, FB = 124, 140
        GA, GB = 156, 172
        T1C, T1S, T2C, T2S = 188, 196, 204, 212
        A1, A2 = 16, 32
        PK = 48
        WU = 56
        TM = 72
        SAVE = 220
        sK, sSEL, sPASS, sWC = 42, 43, 44, 45
        vEX = 3
        if mode == 'merged':
            e(f'''
            v_mov_b32 v{vT}, {L_CNT}
            v_mov_b32 v{vT+2}, 0
            v_mov_b32 v{vT+3}, 0
            ds_write_b64 v{vT}, {vr(vT+2,2)}
            ''')
        e(f'''
        s_mov_b32 s{sPASS}, 0
        s_mov_b32 s{sWC}, s2
        s_mov_b32 s{sSEL}, 0x03020100
        s_cmp_eq_u32 s2, 0
        s_cselect_b32 s{sSEL}, 0x0c0c0100, s{sSEL}
        s_lshl_b32 s{sK}, s2, 13
        ''')
        def f2_loads():
            e(f's_add_u32 s10, s{sK}, {OFF_Y}')
            e(f's_add_u32 s11, s10, 4096')
            for tile in range(2):
                for t in range(4):
                    e(f'buffer_load_dwordx4 {vr(DY+16*tile+4*t,4)}, v{vLO}, s[{sWS}:{sWS+3}], s{10+tile} offen offset:{t*1024}', tag='y')
            e(f'''
            s_lshl_b32 s10, s{sWC}, 13
            s_lshl_b32 s11, s{sWA}, 11
            s_add_u32 s10, s10, s11
            s_add_u32 s10, s10, {OFF_WT}
            ''')
            for tile in range(2):
                e(f'buffer_load_dwordx4 {vr(WT+4*tile,4)}, v{vLO}, s[{sWS}:{sWS+3}], s10 offen offset:{tile*1024}', tag='w')
        f2_loads()
        if mode == 'merged':
            e('s_waitcnt lgkmcnt(0)')
            e('s_barrier')
        vM, vG4, vB, vTH0 = vT, vT+1, vT+2, vT+3
        e(f'''
        v_and_b32 v{vM}, 15, v{vL}
        v_lshrrev_b32 v{vG4}, 4, v{vL}
        v_lshlrev_b32 v{vG4}, 2, v{vG4}
        s_lshl_b32 s10, s{sWA}, 4
        v_add_u32 v{vT+4}, s10, v{vM}        ; 16w+m
        v_add_u32 v{vT+5}, s10, v{vG4}       ; 16w+4g
        v_cvt_f32_u32 v{vM}, v{vM}
        v_cvt_f32_u32 v{vG4}, v{vG4}
        v_cvt_f32_u32 v{vT+4}, v{vT+4}
        v_cvt_f32_u32 v{vT+5}, v{vT+5}
        ''')
        def angles(dst, base, th0, ks, fract=True):
            for i, kk in enumerate(ks):
                if kk == 0: e(f'v_mov_b32 v{dst+i}, v{th0}')
                else: e(f'v_fmamk_f32 v{dst+i}, v{base}, {f2u(float(kk)):#x}, v{th0}')
            if fract:
                for i in range(len(ks)): e(f'v_fract_f32 v{dst+i}, v{dst+i}')
        def consts(ra, rb, n):
            for i in range(n): e(f'v_sin_f32 v{TM+4+i}, v{TM+i}')
            for i in range(n): e(f'v_cos_f32 v{TM+i}, v{TM+i}')
            for i in range(n): e(f'v_cvt_pk_bf16_f32 v{ra+i}, v{TM+i}, v{TM+4+i}')
            for i in range(n): e(f'v_cvt_pk_bf16_f32 v{rb+i}, -v{TM+4+i}, v{TM+i}')
        e(f'v_mul_f32 v{vB}, {fl(1/64)}, v{vT+4}')
        e(f'v_mul_f32 v{vTH0}, v{vB}, v{vG4}')
        for t in range(4):
            angles(TM, vB, vTH0, [16*t+i for i in range(4)])
            consts(FA+4*t, FB+4*t, 4)
        e(f'v_mul_f32 v{vB}, {fl(1/2048)}, v{vT+4}')
        e(f'v_mul_f32 v{vTH0}, v{vB}, v{vG4}')
        angles(T1C, vB, vTH0, [0,1,2,3,16,17,18,19], fract=False)
        for i in range(8): e(f'v_sin_f32 v{T1S+i}, v{T1C+i}')
        for i in range(8): e(f'v_cos_f32 v{T1C+i}, v{T1C+i}')
        for tile in range(2):
            if tile == 0: e(f'v_mul_f32 v{vB}, {fl(1/32)}, v{vM}')
            else: e(f'v_add_f32 v{vB}, 0.5, v{vB}')
            e(f'v_mul_f32 v{vTH0}, v{vB}, v{vG4}')
            for ks in range(2):
                angles(TM, vB, vTH0, [16*ks+i for i in range(4)])
                consts(GA+8*tile+4*ks, GB+8*tile+4*ks, 4)
        for tile in range(2):
            if tile == 0: e(f'v_mul_f32 v{vB}, {fl(1/2048)}, v{vM}')
            else: e(f'v_add_f32 v{vB}, {fl(16/2048)}, v{vB}')
            e(f'v_mul_f32 v{vTH0}, v{vB}, v{vT+5}')
            angles(T2C+4*tile, vB, vTH0, [0,1,2,3], fract=False)
        for i in range(8): e(f'v_sin_f32 v{T2S+i}, v{T2C+i}')
        for i in range(8): e(f'v_cos_f32 v{T2C+i}, v{T2C+i}')
        e(f's_lshl_b32 s10, s{sWA}, 11')
        e(f's_add_u32 s10, s10, {exb}')
        e(f'v_add_u32 v{vEX}, s10, v{vLO}')
        e(f'v_add_u32 v{vT+6}, {exb}, v{vLO}') if exb else e(f'v_mov_b32 v{vT+6}, v{vLO}')
        vEXR = vT+6
        k.raw(f'{N}_PASS:')
        k.wait(vm='y')
        e(f's_cmp_lg_u32 s2, 0')
        e(f's_cbranch_scc1 {N}_NOSEL')
        for i in range(32): e(f'v_perm_b32 v{DY+i}, v{DY+i}, v{DY+i}, s{sSEL}')
        k.pad()
        k.raw(f'{N}_NOSEL:')
        M16 = 'v_mfma_f32_16x16x32_bf16'
        P = lambda r: vr(r, 2)
        def cmul_tw(acc, C, S_, out):
            for tile in range(2):
                re, im = acc+8*tile, acc+8*tile+4
                for h in (0, 2):
                    e(f'v_pk_mul_f32 {P(TM+h)}, {P(im+h)}, {P(S_+4*tile+h)}')
                    e(f'v_pk_mul_f32 {P(TM+4+h)}, {P(re+h)}, {P(S_+4*tile+h)}')
                for h in (0, 2):
                    e(f'v_pk_fma_f32 {P(TM+h)}, {P(re+h)}, {P(C+4*tile+h)}, {P(TM+h)}')
                    e(f'v_pk_fma_f32 {P(TM+4+h)}, {P(im+h)}, {P(C+4*tile+h)}, {P(TM+4+h)} neg_lo:[0,0,1] neg_hi:[0,0,1]')
                for r in range(4): e(f'v_cvt_pk_bf16_f32 v{out+4*tile+r}, v{TM+r}, v{TM+4+r}')
        for tile in range(2):
            for t in range(4):
                for c, F in ((0, FA), (1, FB)):
                    a = A1+8*tile+4*c
                    e(f'{M16} {vr(a,4)}, {vr(DY+16*tile+4*t,4)}, {vr(F+4*t,4)}, {"0" if t == 0 else vr(a,4)}')
        k.wait(vm='w')
        for i in range(8):
            e(f'v_lshlrev_b32 v{WU+i}, 16, v{WT+i}')
            e(f'v_and_b32 v{WU+8+i}, 0xffff0000, v{WT+i}')
        cmul_tw(A1, T1C, T1S, PK)
        for tile in range(2):
            for ks in range(2):
                for c, F in ((0, GA), (1, GB)):
                    a = A2+8*tile+4*c
                    e(f'{M16} {vr(a,4)}, {vr(F+8*tile+4*ks,4)}, {vr(PK+4*ks,4)}, {"0" if ks == 0 else vr(a,4)}')
        for tile in range(2):
            re, im = A2+8*tile, A2+8*tile+4
            wr_, wi_ = WU+4*tile, WU+8+4*tile
            for h in (0, 2):
                e(f'v_pk_mul_f32 {P(TM+h)}, {P(im+h)}, {P(wi_+h)}')
                e(f'v_pk_mul_f32 {P(TM+4+h)}, {P(re+h)}, {P(wi_+h)}')
            for h in (0, 2):
                e(f'v_pk_fma_f32 {P(TM+h)}, {P(re+h)}, {P(wr_+h)}, {P(TM+h)} neg_lo:[0,0,1] neg_hi:[0,0,1]')
                e(f'v_pk_fma_f32 {P(TM+4+h)}, {P(im+h)}, {P(wr_+h)}, {P(TM+4+h)}')
            for r in range(4): e(f'v_cvt_pk_bf16_f32 v{PK+4*tile+r}, v{TM+4+r}, v{TM+r}')
        for tile in range(2):
            for ks in range(2):
                for c, F in ((0, GA), (1, GB)):
                    a = A1+8*tile+4*c
                    e(f'{M16} {vr(a,4)}, {vr(PK+4*ks,4)}, {vr(F+8*tile+4*ks,4)}, {"0" if ks == 0 else vr(a,4)}')
        cmul_tw(A1, T2C, T2S, PK)
        e(f'ds_write_b128 v{vEX}, {vr(PK,4)}')
        e(f'ds_write_b128 v{vEX}, {vr(PK+4,4)} offset:1024')
        e('s_waitcnt lgkmcnt(0)')
        if mode == 'fft':
            e('s_barrier')
        else:
            e(f'''
            v_mov_b32 v{TM}, {L_CNT}
            v_mov_b32 v{TM+1}, 1
            s_mov_b64 s[46:47], exec
            s_mov_b64 exec, 1
            ds_add_u32 v{TM}, v{TM+1}
            s_mov_b64 exec, s[46:47]
            s_lshl_b32 s10, s{sPASS}, 2
            s_add_u32 s10, s10, 4
            {N}_SPIN1:
            ds_read_b32 v{TM+1}, v{TM}
            s_waitcnt lgkmcnt(0)
            v_readfirstlane_b32 s11, v{TM+1}
            s_cmp_lt_u32 s11, s10
            s_cbranch_scc1 {N}_SPIN1
            ''')
        for t in range(4):
            for tile in range(2):
                e(f'ds_read_b128 {vr(DY+16*tile+4*t,4)}, v{vEXR} offset:{t*2048+tile*1024}', tag=('x', t, tile))
        for t in range(4):
            for tile in range(2):
                k.wait(lg=('x', t, tile))
                for c, F in ((0, FA), (1, FB)):
                    a = A2+8*tile+4*c
                    e(f'{M16} {vr(a,4)}, {vr(F+4*t,4)}, {vr(DY+16*tile+4*t,4)}, {"0" if t == 0 else vr(a,4)}')
        k.pad()
        e(f's_cmp_lg_u32 s2, 0')
        e(f's_cbranch_scc1 {N}_OUT')
        e(f's_cmp_eq_u32 s{sPASS}, 0')
        e(f's_cbranch_scc0 {N}_P1')
        for tile in range(2):
            for r in range(4): e(f'v_mov_b32 v{SAVE+4*tile+r}, v{A2+8*tile+4+r}')
        e(f'''
        s_mov_b32 s{sPASS}, 1
        s_movk_i32 s{sWC}, 256
        s_mov_b32 s{sSEL}, 0x0c0c0302
        v_add_u32 v{vEX}, 8192, v{vEX}
        v_add_u32 v{vEXR}, 8192, v{vEXR}
        ''')
        f2_loads()
        e(f's_branch {N}_PASS')
        k.raw(f'{N}_P1:')
        for tile in range(2):
            for r in range(4):
                e(f'v_mov_b32 v{A2+8*tile+r}, v{A2+8*tile+4+r}')
                e(f'v_mov_b32 v{A2+8*tile+4+r}, v{SAVE+4*tile+r}')
        k.raw(f'{N}_OUT:')
        k.vm = []
        e(f'''
        s_lshl_b32 s10, s{sWA}, 10
        s_add_u32 s10, s10, s{sK}
        s_add_u32 s10, s10, {OFF_Z}
        s_add_u32 s11, s10, 4096
        ''')
        for tile in range(2):
            for r in range(4): e(f'v_cvt_pk_bf16_f32 v{PK+4*tile+r}, v{A2+8*tile+4+r}, v{A2+8*tile+r}')
            e(f'buffer_store_dwordx4 {vr(PK+4*tile,4)}, v{vLO}, s[{sWS}:{sWS+3}], s{10+tile} offen{sc1}')
        if mode == 'fft':
            e(f'{N}_END:\ns_endpgm')
            return k.text(), kdesc(name, 232, 64)
    FI = 84
    ZF = 148
    TM = 212
    vB, vTH0 = vT+2, vT+3
    def finv_setup():
        e(f'''
        v_bfe_u32 v{vT}, v{vL}, 2, 1
        v_lshlrev_b32 v{vT}, 5, v{vT}
        v_bfe_u32 v{vT+1}, v{vL}, 3, 2
        v_lshl_add_u32 v{vT}, v{vT+1}, 3, v{vT}
        v_and_b32 v{vT+1}, 3, v{vL}
        v_lshl_add_u32 v{vT}, v{vT+1}, 1, v{vT}
        s_lshl_b32 s10, s{sNT}, 6
        v_add_u32 v{vT}, s10, v{vT}
        v_cvt_f32_u32 v{vT}, v{vT}
        v_lshrrev_b32 v{vT+1}, 5, v{vL}
        v_lshlrev_b32 v{vT+1}, 2, v{vT+1}
        s_lshl_b32 s10, s{sWA}, 6
        v_add_u32 v{vT+1}, s10, v{vT+1}
        v_cvt_f32_u32 v{vT+1}, v{vT+1}
        ''')
    def finv_dt(dt):
        if dt == 0: e(f'v_mul_f32 v{vB}, {fl(1/512)}, v{vT}')
        else: e(f'v_add_f32 v{vB}, {fl(1/512)}, v{vB}')
        e(f'v_mul_f32 v{vTH0}, v{vB}, v{vT+1}')
        for st in range(8):
            for i in range(4):
                kk = 8*st + i
                if kk == 0: e(f'v_mov_b32 v{TM+i}, v{vTH0}')
                else: e(f'v_fmamk_f32 v{TM+i}, v{vB}, {f2u(float(kk)):#x}, v{vTH0}')
            for i in range(4): e(f'v_fract_f32 v{TM+i}, v{TM+i}')
            for i in range(4): e(f'v_sin_f32 v{TM+4+i}, v{TM+i}')
            for i in range(4): e(f'v_cos_f32 v{TM+i}, v{TM+i}')
            for i in range(4): e(f'v_cvt_pk_bf16_f32 v{FI+8*st+4*dt+i}, v{TM+i}, -v{TM+4+i}')
    finv_setup()
    finv_dt(0)
    if mode == 'merged':
        e(f'''
        s_waitcnt vmcnt(0)
        v_mov_b32 v{TM}, {L_CNT+4}
        v_mov_b32 v{TM+1}, 1
        v_mov_b32 v{TM+3}, 0
        s_mov_b64 s[46:47], exec
        s_mov_b64 exec, 1
        ds_add_rtn_u32 v{TM+2}, v{TM}, v{TM+1}
        s_waitcnt lgkmcnt(0)
        v_readfirstlane_b32 s11, v{TM+2}
        s_lshl_b32 s10, s2, 6
        s_add_u32 s10, s10, {OFF_FL}
        s_cmp_lg_u32 s11, 3
        s_cbranch_scc1 {N}_NOFLAG
        buffer_store_dword v{TM+1}, v{TM+3}, s[{sWS}:{sWS+3}], s10 offen sc1
        {N}_NOFLAG:
        s_mov_b64 exec, s[46:47]
        ''')
        k.vm = []
    finv_dt(1)
    e(f'''
    s_cmp_lg_u32 s{sWA}, 0
    s_cbranch_scc1 {N}_NOK0
    s_mov_b64 s[46:47], exec
    s_mov_b32 exec_hi, 0
    v_mov_b32 v{FI}, 0x3f003f00
    v_mov_b32 v{FI+4}, 0xbf003f00
    s_mov_b64 exec, s[46:47]
    {N}_NOK0:
    ''')
    load_g()
    e(f'''
    v_lshrrev_b32 v{vT+4}, 5, v{vL}
    v_lshlrev_b32 v{vT+4}, 15, v{vT+4}
    v_add_u32 v{vT+4}, v{vT+4}, v{vT}
    s_lshl_b32 s12, s{sWA}, 19
    s_lshl_b32 s11, s{sMT}, 8
    s_add_u32 s12, s12, s11
    s_add_u32 s12, s12, {OFF_Z}
    ''')
    if mode == 'merged':
        e(f'''
        v_lshlrev_b32 v{vT+5}, 6, v{vL}
        s_lshl_b32 s10, s{sWA}, 12
        s_add_u32 s10, s10, {OFF_FL}
        s_movk_i32 s13, 0x7fff
        {N}_POLL:
        buffer_load_dword v{TM}, v{vT+5}, s[{sWS}:{sWS+3}], s10 offen sc1
        s_waitcnt vmcnt(0)
        v_cmp_eq_u32 vcc, 0, v{TM}
        s_cbranch_vccz {N}_GO
        s_sleep 4
        s_sub_u32 s13, s13, 1
        s_cmp_lg_u32 s13, 0
        s_cbranch_scc1 {N}_POLL
        {N}_GO:
        ''')
    for st in range(8):
        for i in range(4):
            e(f'buffer_load_dwordx2 {vr(ZF+8*st+2*i,2)}, v{vT+4}, s[{sWS}:{sWS+3}], s12 offen{sc1}', tag=('z', st))
            if not (st == 7 and i == 3): e(f's_add_u32 s12, s12, {8192 if i < 3 else 8192*5}')
    for st in range(8):
        k.wait(vm=('z', st))
        z = ZF + 8*st
        e(f'v_swap_b32 v{z+1}, v{z+2}')
        e(f'v_swap_b32 v{z+5}, v{z+6}')
        e(f'v_swap_b32 v{z+2}, v{z+4}')
        e(f'v_swap_b32 v{z+3}, v{z+5}')
        for dt, ee in ((0,0),(1,0),(0,1),(1,1)):
            a = ACC + 32*dt + 16*ee
            e(f'v_mfma_f32_32x32x16_bf16 {vr(a,16)}, {vr(FI+8*st+4*dt,4)}, {vr(z+4*ee,4)}, {"0" if st == 0 else vr(a,16)}')
    e(f'v_mul_f32 v{vG}, {fl(2.0**-19)}, v{vG}')
    e(f'v_mul_f32 v{vG+1}, {fl(2.0**-19)}, v{vG+1}')
    k.pad()
    k.raw(f'{N}_RED:')
    e(f's_lshl_b32 s10, s{sW}, 14')
    e(f'v_add_u32 v{vT}, s10, v{vLO}')
    for dt in range(2):
        for ee in range(2):
            a = ACC + 32*dt + 16*ee
            for q in range(4):
                for h in (0, 2):
                    e(f'v_pk_mul_f32 {vr(a+4*q+h,2)}, {vr(a+4*q+h,2)}, {vr(vG,2)} op_sel:[0,{ee}] op_sel_hi:[1,{ee}]')
                e(f'ds_write_b128 v{vT}, {vr(a+4*q,4)} offset:{((dt*2+ee)*4+q)*1024}')
    e(f'''
    s_and_b32 s10, s{sW}, 1
    s_lshl_b32 s10, s10, 12
    s_lshr_b32 s11, s{sW}, 1
    s_lshl_b32 s12, s11, 10
    s_add_u32 s12, s12, s10
    v_add_u32 v{vT}, s12, v{vLO}
    v_add_u32 v{vT+1}, 0x10000, v{vT}
    v_and_b32 v{vT+2}, 31, v{vL}
    v_lshrrev_b32 v{vT+3}, 1, v{vT+2}
    v_and_b32 v{vT+2}, 1, v{vT+2}
    v_lshl_add_u32 v{vT+3}, v{vT+2}, 6, v{vT+3}
    v_lshlrev_b32 v{vT+3}, 10, v{vT+3}
    v_lshrrev_b32 v{vT+2}, 5, v{vL}
    v_lshl_add_u32 v{vT+3}, v{vT+2}, 6, v{vT+3}
    s_lshl_b32 s10, s10, 3                 ; e*32*1024
    s_lshl_b32 s11, s11, 4
    s_add_u32 s10, s10, s11
    s_lshr_b32 s11, s{sMT}, 4
    s_lshl_b32 s11, s11, 14
    s_add_u32 s10, s10, s11
    s_and_b32 s11, s{sMT}, 15
    s_lshl_b32 s11, s11, 17
    s_add_u32 s10, s10, s11
    s_lshl_b32 s11, s{sNT}, 7
    s_add_u32 s10, s10, s11
    s_waitcnt lgkmcnt(0)
    s_barrier
    ''')
    R = 84
    for p in range(8):
        for dt in range(2):
            e(f'ds_read_b128 {vr(R+8*p+4*dt,4)}, v{vT + (p>>2)} offset:{(p&3)*16384 + dt*8192}', tag=('r', p))
    for p in range(1, 8):
        k.wait(lg=('r', p))
        for h in range(0, 8, 2):
            e(f'v_pk_add_f32 {vr(R+h,2)}, {vr(R+h,2)}, {vr(R+8*p+h,2)}')
    for r in range(4): e(f'v_cvt_pk_bf16_f32 v{R+8+r}, v{R+r}, v{R+4+r}')
    e(f'buffer_store_dwordx4 {vr(R+8,4)}, v{vT+3}, s[{sOUT}:{sOUT+3}], s10 offen')
    e(f'{N}_END:\ns_endpgm')
    return k.text(), kdesc(name, 232, 64)
```

```python
import numpy as np
S, D, F = 2048, 512, 1792
OFF_H  = 0
OFF_Y  = 0x700000
OFF_Z  = 0x900000
OFF_WT = 0xB00000
OFF_WD = 0xD10000
OFF_G  = 0xED0000
OFF_FL = 0xEE0000
WS_USED = 0x1000000

def bf16_to_f32(u16): return (u16.astype(np.uint32) << 16).view(np.float32)
def f32_to_bf16(f):
    u = np.ascontiguousarray(f, dtype=np.float32).view(np.uint32)
    return ((u + 0x7FFF + ((u >> 16) & 1)) >> 16).astype(np.uint16)
def rb(f): return bf16_to_f32(f32_to_bf16(f))

def sigma(p):
    tile = p >> 10; t = (p >> 8) & 3; g = (p >> 6) & 3; m = (p >> 2) & 15; i = p & 3
    return 16*tile + m + 32*(16*t + 4*g + i)
SIG = sigma(np.arange(S))

def mu(m):
    return ((m >> 2) & 1) * 16 + ((m >> 3) & 3) * 4 + (m & 3)

def tables():
    d = np.arange(D)[:, None]; k = np.arange(256)[None, :]
    C = np.cos(2*np.pi*((d*k) % 512)/512); Sn = -np.sin(2*np.pi*((d*k) % 512)/512)
    Sn[:, 0] = np.where(np.arange(D) % 2 == 0, 1.0, -1.0)
    return rb(C), rb(Sn)

def gelu(x): return 0.5*x*(1+np.tanh(np.sqrt(2/np.pi)*(x+0.044715*x**3)))

def k1_model(x, wr, wi, wg, wu, wd, gw):
    xp = x[SIG].astype(np.float64)
    h = gelu(xp @ wg) * (xp @ wu)
    hF = h.reshape(32, 32, 2, 112, 2, 8).transpose(0, 3, 2, 4, 1, 5)
    C, Sn = tables()
    Yr = xp @ C; Yi = xp @ Sn
    Y = np.stack([Yr.T, Yi.T], -1)
    W = np.stack([wr, wi], -1)
    Wt = W.reshape(2, 4, 4, 4, 16, 257, 2).transpose(5, 3, 0, 1, 4, 2, 6)
    wd4 = wd.reshape(112, 2, 8, 8, 32, 2)
    WdF = wd4[:, :, :, :, mu(np.arange(32)), :].transpose(3, 0, 5, 1, 4, 2)
    g = 1/(1+np.exp(-(xp * gw).sum(-1)))
    return dict(hF=hF, Y=Y, Wt=Wt, WdF=WdF, g=g, h=h)

def f2_model(Y, wr, wi, exact=True):
    inv = np.argsort(SIG)
    Yc = (Y[..., 0] + 1j*Y[..., 1])[:, inv]
    W = (wr + 1j*wi).T
    Z = np.zeros_like(Yc)
    Z[1:] = np.fft.ifft(np.fft.fft(Yc[1:], axis=1) * W[1:256], axis=1) * S
    z0 = (np.fft.ifft(np.fft.fft(Yc[0].real) * W[0]) * S).real
    z256 = (np.fft.ifft(np.fft.fft(Yc[0].imag) * W[256]) * S).real
    Z[0] = z0 + 1j*z256
    Z = Z[:, SIG]
    return np.stack([Z.real, Z.imag], -1)

def crb(z): return rb(z.real.astype(np.float32)) + 1j*rb(z.imag.astype(np.float32))
def f2_emul(Y, wr, wi):
    inv = np.argsort(SIG)
    Yc = (Y[..., 0] + 1j*Y[..., 1])[:, inv]
    cols = np.concatenate([Yc[0:1].real + 0j, Yc[1:], Yc[0:1].imag + 0j], 0)
    W = (wr + 1j*wi).T
    a = np.arange(64); b = np.arange(32)
    F64 = crb(np.exp(-2j*np.pi*np.outer(a, a)/64)); F32 = crb(np.exp(-2j*np.pi*np.outer(b, b)/32))
    T = np.exp(-2j*np.pi*np.outer(b, a)/2048)
    X = cols.reshape(257, 64, 32)
    U = np.einsum('kab,aj->kbj', X, F64) * T
    U = crb(U)
    V = np.einsum('cb,kbj->kcj', F32, U)
    V = crb(V * W.reshape(257, 32, 64))
    R = np.einsum('kcj,cb->kjb', V, F32.conj()) * T.conj().T
    R = crb(R)
    Zc = np.einsum('aj,kjb->kab', F64.conj(), R).reshape(257, 2048)
    Z = Zc[:256].copy(); Z[0] = Zc[0].real + 1j*Zc[256].real
    Z = crb(Z)[:, SIG]
    return np.stack([Z.real, Z.imag], -1)

def g2_model(h, Z, wd, g, rnd=False):
    d = np.arange(D)[None, :]; k = np.arange(256)[:, None]
    Fc = np.cos(2*np.pi*((d*k) % 512)/512); Fs = -np.sin(2*np.pi*((d*k) % 512)/512)
    Fc[0] = 0.5; Fs[0] = np.where(np.arange(D) % 2 == 0, 0.5, -0.5)
    if rnd: Fc = rb(Fc); Fs = rb(Fs)
    a = (Z[..., 0].T @ Fc + Z[..., 1].T @ Fs) * 2.0**-19
    b = h @ wd
    outp = g[:, None]*a + (1-g[:, None])*b
    out = np.zeros_like(outp); out[SIG] = outp
    return out

def ref_np(x, wr, wi, wg, wu, wd, gw):
    x = x.astype(np.float64)
    g = 1/(1+np.exp(-(x*gw).sum(-1, keepdims=True)))
    a = np.fft.irfft2(np.fft.rfft2(x) * (wr + 1j*wi), s=(S, D))
    b = (gelu(x@wg)*(x@wu)) @ wd
    return g*a + (1-g)*b

def make_inputs(seed=0):
    r = np.random.RandomState(seed)
    x = rb(rb(r.randn(S, D))*0.05); wr = rb(rb(rb(r.randn(S, 257))*0.05)*0.02); wi = rb(rb(rb(r.randn(S, 257))*0.05)*0.02)
    wg = rb(rb(rb(r.randn(D, F))*0.2)*D**-0.5); wu = rb(rb(rb(r.randn(D, F))*0.2)*D**-0.5); wd = rb(rb(rb(r.randn(F, D))*0.2)*F**-0.5)
    gw = rb(rb(rb(r.randn(D))*0.05)*16)
    return x, wr, wi, wg, wu, wd, gw

if __name__ == "__main__":
    inp = make_inputs()
    x, wr, wi, wg, wu, wd, gw = inp
    ref = ref_np(*inp)
    m = k1_model(*inp)
    Z = f2_model(m['Y'], wr, wi)
    out = g2_model(m['h'], Z, wd, m['g'])
    print("ref absmax", np.abs(ref).max(), "rms", ref.std(), "thr", np.abs(ref).max()/32)
    print("model (only F table rounded) err", np.abs(out-ref).max())
    Z2 = f2_emul(rb(m['Y']), wr, wi)
    print("Z emul rel err", np.abs(Z2-Z).std()/Z.std())
    out2 = rb(g2_model(rb(m['h']), Z2, wd, m['g'], rnd=True))
    print("emul err max", np.abs(out2-ref).max(), "rms", (out2-ref).std())
```

```python
import sys
from k1 import *
from k2 import *
HDR = open('gated_mix__spectral_gfnet__glu_gated_geglu__prompt.s.ref').read().split('; Override')[0]
def assemble(kernels, launches):
    s = HDR
    for l in launches: s += l + '\n'
    s += '.amdgcn_target "amdgcn-amd-amdhsa--gfx950"\n.text\n'
    for t, d in kernels: s += t
    s += '.section .rodata,"a"\n'
    for t, d in kernels: s += d
    s += gen_table()
    return s
if __name__ == '__main__':
    var = sys.argv[2] if len(sys.argv) > 2 else 'k3'
    L1 = f'; @launch kernel=k1_kernel grid=(256,1,1) block=(512,1,1) lds={K1_LDS}'
    if var == 'k1':
        ks = [gen_k1()]; ls = [L1]
    elif var == 'k3':
        ks = [gen_k1(), gen_k2('kf_kernel', 'fft'), gen_k2('kg_kernel', 'g2')]
        ls = [L1, '; @launch kernel=kf_kernel grid=(256,1,1) block=(256,1,1) lds=16384',
              f'; @launch kernel=kg_kernel grid=(256,1,1) block=(512,1,1) lds={K2_LDS}']
    elif var == 'k2':
        ks = [gen_k1(), gen_k2('k2_kernel', 'merged')]
        ls = [L1, f'; @launch kernel=k2_kernel grid=(256,1,1) block=(512,1,1) lds={K2_LDS}']
    open(sys.argv[1], 'w').write(assemble(ks, ls))
```

```python
import re

TRANS = ('v_exp_f32','v_log_f32','v_rcp_f32','v_rsq_f32','v_sqrt_f32','v_sin_f32','v_cos_f32')

def regs_of(tok):
    tok = tok.strip()
    tok = tok.lstrip('-')
    m = re.fullmatch(r'abs\((.*)\)', tok) or re.fullmatch(r'\|(.*)\|', tok)
    if m: tok = m.group(1)
    m = re.fullmatch(r'([vas])(\d+)', tok)
    if m: return {(m.group(1), int(m.group(2)))}
    m = re.fullmatch(r'([vas])\[(\d+):(\d+)\]', tok)
    if m: return {(m.group(1), i) for i in range(int(m.group(2)), int(m.group(3))+1)}
    if tok in ('vcc','exec','m0','scc'): return {('x', tok)}
    if tok in ('vcc_lo','vcc_hi'): return {('x','vcc')}
    if tok in ('exec_lo','exec_hi'): return {('x','exec')}
    return set()

class Ins:
    def __init__(self, text):
        self.text = text
        t = text.split(';')[0].strip()
        parts = t.split(None, 1)
        self.op = parts[0]
        rest = parts[1] if len(parts) > 1 else ''
        ops = [o.strip() for o in rest.split(',')] if rest else []
        self.mods = ''
        clean = []
        depth_join = []
        for o in ops:
            clean.append(o)
        merged = []
        for o in clean:
            if merged and merged[-1].count('[') > merged[-1].count(']'):
                merged[-1] += ',' + o
            else:
                merged.append(o)
        toks = []
        for o in merged:
            sp = o.split()
            toks.append(sp[0] if sp else '')
            if len(sp) > 1: self.mods += ' ' + ' '.join(sp[1:])
        self.toks = toks
        op = self.op
        self.cls = 'other'
        self.dst = set(); self.src = set(); self.srcC = set(); self.srcAB = set()
        self.passes = 0
        self.store_data = set()
        if op.startswith('v_mfma'):
            self.cls = 'mfma'
            self.dst = regs_of(toks[0]); self.srcAB = regs_of(toks[1]) | regs_of(toks[2]); self.srcC = regs_of(toks[3])
            self.src = self.srcAB | self.srcC
            self.passes = 8 if '32x32x16' in op else 4 if '16x16x32' in op else 16
        elif op.startswith('v_'):
            self.cls = 'trans' if op.replace('_e32','').replace('_e64','') in TRANS else 'valu'
            if op.startswith('v_cmp'):
                self.dst = regs_of(toks[0]); self.src = set().union(*[regs_of(x) for x in toks[1:]])
                if op.startswith('v_cmpx'): self.dst |= {('x','exec')}
            elif op.startswith('v_swap') or op.startswith('v_permlane'):
                self.dst = regs_of(toks[0]) | regs_of(toks[1]); self.src = set(self.dst)
            elif '_co_' in op:
                self.dst = regs_of(toks[0]) | regs_of(toks[1]); self.src = set().union(*[regs_of(x) for x in toks[2:]])
            elif op == 'v_nop':
                pass
            else:
                self.dst = regs_of(toks[0]); self.src = set().union(*[regs_of(x) for x in toks[1:]]) if len(toks) > 1 else set()
                if op.startswith('v_fmac') or op.startswith('v_pk_fmac') or op.startswith('v_writelane') or op.startswith('v_dot2c'): self.src |= self.dst
                if op.startswith('v_cndmask') and len(toks) == 3: self.src |= {('x','vcc')}
            self.dpp = ('row_' in self.mods or 'quad_perm' in self.mods or 'wave_' in self.mods or '_dpp' in op)
        elif op.startswith('buffer_') or op.startswith('global_'):
            self.cls = 'vmem'
            allr = [regs_of(x) for x in toks]
            if op in ('buffer_inv','buffer_wbl2'):
                pass
            elif 'lds' in self.mods.split() or '_lds_' in op:
                self.src = set().union(*allr) | {('x','m0')}
                self.ldsdma = True
            elif 'load' in op:
                self.dst = allr[0]; self.src = set().union(*allr[1:])
            elif op.startswith('buffer_store') or op.startswith('buffer_atomic'):
                self.src = set().union(*allr); self.store_data = allr[0]
                if 'atomic' in op and 'sc0' in self.mods: self.dst = allr[0]
            else:
                self.src = set().union(*allr); self.store_data = allr[1]
        elif op.startswith('ds_'):
            self.cls = 'ds'
            allr = [regs_of(x) for x in toks]
            if 'read' in op or 'rtn' in op or 'permute' in op or 'swizzle' in op:
                self.dst = allr[0]; self.src = set().union(*allr[1:])
            else:
                self.src = set().union(*allr)
        elif op.startswith('s_'):
            self.cls = 'salu'
            if op == 's_nop':
                self.cls = 'nop'
            elif op.startswith('s_cmp') or op.startswith('s_cbranch') or op in ('s_branch','s_barrier','s_waitcnt','s_endpgm','s_setprio','s_sleep'):
                self.src = set().union(*[regs_of(x) for x in toks]) if toks else set()
            else:
                self.dst = regs_of(toks[0]) if toks else set()
                self.src = set().union(*[regs_of(x) for x in toks[1:]]) if len(toks) > 1 else set()
                if 'saveexec' in op: self.dst |= {('x','exec')}
    def states(self):
        if self.cls == 'nop': return int(self.toks[0], 0) + 1
        return 1

def need(p, c):
    n = 0
    pv = p.cls in ('valu','trans')
    cv = c.cls in ('valu','trans')
    vec = lambda s: {r for r in s if r[0] in 'va'}
    sg = lambda s: {r for r in s if r[0] == 's' or r == ('x','vcc')}
    if pv:
        if c.cls == 'mfma' and vec(p.dst) & c.src: n = max(n, 2)
        if c.cls == 'mfma' and ('x','exec') in p.dst: n = max(n, 4)
        if p.cls == 'trans' and (c.cls == 'valu' or c.cls == 'mfma') and p.dst & c.src: n = max(n, 1)
        if c.cls == 'vmem' and sg(p.dst) & c.src: n = max(n, 5)
        if cv and sg(p.dst) & c.src:
            n = max(n, 4 if (c.op.startswith('v_readlane') or c.op.startswith('v_writelane')) else 2)
        if cv and (c.op.startswith('v_readlane') or c.op.startswith('v_readfirstlane')) and vec(p.dst) & c.src: n = max(n, 1)
        if cv and c.op.startswith('v_permlane') and vec(p.dst) & c.src: n = max(n, 2)
        if cv and getattr(c, 'dpp', False) and vec(p.dst) & c.src: n = max(n, 2)
        if cv and getattr(c, 'dpp', False) and ('x','exec') in p.dst: n = max(n, 5)
        if ('x','exec') in p.dst and cv and (c.op.startswith('v_read') or c.op.startswith('v_writelane') or c.op.startswith('v_permlane')): n = max(n, 4)
        if c.cls == 'salu' and sg(p.dst) & c.src: n = max(n, 1)
        if ('op_sel' in p.mods and not p.op.startswith('v_pk_')) or 'sdwa' in p.op or 'dst_sel' in p.mods:
            if cv and p.dst & (c.src | c.dst): n = max(n, 1)
    if p.cls == 'mfma':
        t_rw = {4: 8, 8: 12, 16: 20}[p.passes]
        if c.cls == 'mfma':
            if p.dst & c.srcAB: n = max(n, t_rw)
            if p.dst & c.srcC:
                if not (p.dst == c.srcC and p.passes == c.passes): n = max(n, {4: 6, 8: 10, 16: 18}[p.passes])
            elif p.dst & c.dst:
                n = max(n, {4: 6, 8: 10, 16: 18}[p.passes])
        elif c.cls in ('valu','trans','vmem','ds'):
            if p.dst & (c.src | c.dst): n = max(n, t_rw)
            if cv and p.srcC & c.dst: n = max(n, {4: 3, 8: 7, 16: 15}[p.passes])
    if p.cls == 'salu' and ('x','m0') in p.dst and getattr(c, 'ldsdma', False): n = max(n, 1)
    if p.cls == 'vmem' and len(p.store_data) >= 3 and (p.store_data & c.dst):
        n = max(n, 2 if cv else 1)
    if p.cls == 'ds' and p.op.startswith('ds_write') and cv and len(p.src) >= 4 and (p.src & c.dst):
        n = max(n, 2)
    return n

class Kern:
    def __init__(self):
        self.out = []
        self.hist = []
        self.vm = []
        self.lg = []
        self.nops = 0
    def raw(self, s):
        self.out.append(s)
    def label(self, name, flush=True):
        self.out.append(name + ':')
    def e(self, text, tag=None):
        for line in text.split('\n'):
            line = line.strip()
            if not line or line.startswith(';'):
                if line: self.out.append('    ' + line)
                continue
            if line.endswith(':'):
                self.out.append(line); continue
            ins = Ins(line)
            dist = 0; req = 0
            for p in reversed(self.hist):
                r = need(p, ins) - dist
                if r > req: req = r
                dist += p.states()
                if dist >= 20: break
            while req > 0:
                k = min(req, 16)
                nop = Ins(f's_nop {k-1}')
                self.out.append(f'    s_nop {k-1}'); self.hist.append(nop); req -= k; self.nops += k
            self.out.append('    ' + line)
            self.hist.append(ins)
            if len(self.hist) > 40: self.hist = self.hist[-30:]
            if ins.cls == 'vmem' and ins.op not in ('buffer_inv','buffer_wbl2'): self.vm.append(tag)
            if ins.cls == 'ds': self.lg.append(tag)
            if ins.op == 's_waitcnt':
                m = re.search(r'vmcnt\((\d+)\)', line)
                if m:
                    n = int(m.group(1)); self.vm = self.vm[len(self.vm)-n:] if n < len(self.vm) and n > 0 else ([] if n == 0 else self.vm)
                m = re.search(r'lgkmcnt\((\d+)\)', line)
                if m:
                    n = int(m.group(1)); self.lg = self.lg[len(self.lg)-n:] if n < len(self.lg) and n > 0 else ([] if n == 0 else self.lg)
    def _cnt(self, q, tags):
        if not isinstance(tags, (list, set)): tags = [tags]
        last = -1
        for i, t in enumerate(q):
            if t in tags: last = i
        if last < 0: return None
        return len(q) - 1 - last
    def wait(self, vm=None, lg=None):
        parts = []
        if vm is not None:
            n = self._cnt(self.vm, vm)
            if n is not None: parts.append(f'vmcnt({min(n,63)})')
        if lg is not None:
            n = self._cnt(self.lg, lg)
            if n is not None: parts.append(f'lgkmcnt({min(n,15)})')
        if parts: self.e('s_waitcnt ' + ' '.join(parts))
    def pad(self, n=20):
        dist = 0; req = 0
        for p in reversed(self.hist):
            w = 0
            if p.cls == 'mfma': w = {4: 8, 8: 12, 16: 20}[p.passes]
            elif p.cls in ('valu','trans'): w = 5 if any(r[0] == 's' or r[0] == 'x' for r in p.dst) else 2
            elif p.cls == 'vmem' and len(p.store_data) >= 3: w = 2
            elif p.cls == 'salu' and ('x','m0') in p.dst: w = 1
            req = max(req, w - dist)
            dist += p.states()
            if dist >= 20: break
        while req > 0:
            k = min(req, 16); self.e(f's_nop {k-1}'); req -= k
    diag = False
    STAMP0 = 84
    def stamp(self, i):
        if self.diag:
            self.e(f's_memrealtime s[{self.STAMP0+2*i}:{self.STAMP0+2*i+1}]')
    def dump_stamps(self, sWS, sW, base, vt, n=8):
        if not self.diag: return
        self.e('s_waitcnt vmcnt(0) lgkmcnt(0)')
        self.stamp(n-1)
        self.e('s_waitcnt lgkmcnt(0)')
        self.e('s_mov_b64 exec, 1')
        for i in range(n): self.e(f'v_mov_b32 v{vt+i}, s{self.STAMP0+2*i}')
        self.e(f's_lshl_b32 s10, s2, 3\ns_add_u32 s10, s10, s{sW}\ns_lshl_b32 s10, s10, 5\ns_add_u32 s10, s10, {base}')
        self.e(f'v_mov_b32 v{vt+8}, 0')
        self.e(f'buffer_store_dwordx4 v[{vt}:{vt+3}], v{vt+8}, s[{sWS}:{sWS+3}], s10 offen')
        self.e(f'buffer_store_dwordx4 v[{vt+4}:{vt+7}], v{vt+8}, s[{sWS}:{sWS+3}], s10 offen offset:16')
    def text(self):
        return '\n'.join(self.out) + '\n'

def vr(a, n=1, f='v'):
    return f'{f}{a}' if n == 1 else f'{f}[{a}:{a+n-1}]'
def sr(a, n=1):
    return vr(a, n, 's')

def kdesc(name, nvgpr, nsgpr=96, accum=None):
    accum = accum if accum is not None else (nvgpr + 3)//4*4
    return f'''.p2align 6
.amdhsa_kernel {name}
  .amdhsa_next_free_vgpr {nvgpr}
  .amdhsa_next_free_sgpr {nsgpr}
  .amdhsa_accum_offset {accum}
  .amdhsa_group_segment_fixed_size 0
  .amdhsa_kernarg_size 88
  .amdhsa_user_sgpr_count 2
  .amdhsa_user_sgpr_kernarg_segment_ptr 1
  .amdhsa_system_sgpr_workgroup_id_x 1
  .amdhsa_float_denorm_mode_32 3
  .amdhsa_float_denorm_mode_16_64 3
.end_amdhsa_kernel
'''
```

```python
from asmlib import *
from model import OFF_H, OFF_Y, OFF_Z, OFF_WT, OFF_WD, OFF_G, OFF_FL, WS_USED
import math, struct

def f2u(f): return struct.unpack('<I', struct.pack('<f', f))[0]

K1_LDS = 147456
XB = 49152

def gen_k1(name='k1_kernel', st_mod='', diag=False):
    k = Kern(); e = k.e; k.diag = diag
    vL = 1
    vXa, vXb, vW0, vW1 = 2, 3, 4, 5
    vXR = 6
    vWR = 14
    vT = 16
    FR = 24
    ACC = 56
    SA = 120
    vSAd = 128
    SBr = 130
    vSBd = 129
    NV = 144
    sX, sB0, sB1, sWS, sWR, sWI, sWD, sGW = 24, 28, 32, 36, 40, 44, 48, 52
    sRB, sCG, sW, sSTG, sWOFF = 56, 57, 58, 59, 60
    sXO = 64
    sM0X, sM0W = 68, 69
    k.raw(f'.globl {name}\n.p2align 8\n.type {name},@function\n{name}:')
    e(f'''
    s_cmp_ge_u32 s2, 256
    s_cbranch_scc1 K1_END
    s_load_dwordx4 s[4:7], s[0:1], 0
    s_load_dwordx2 s[8:9], s[0:1], 16
    s_load_dwordx4 s[12:15], s[0:1], 32
    s_load_dwordx4 s[16:19], s[0:1], 48
    s_load_dwordx2 s[20:21], s[0:1], 80
    s_getpc_b64 s[62:63]
    ''')
    k.raw('''    s_add_u32 s62, s62, dft_tab@rel32@lo+4
    s_addc_u32 s63, s63, dft_tab@rel32@hi+12''')
    k.stamp(0)
    e(f'''
    v_lshrrev_b32 v{vT}, 6, v0
    v_and_b32 v{vL}, 63, v0
    s_and_b32 s10, s2, 1
    s_lshl_b32 s10, s10, 2
    s_bfe_u32 s11, s2, 0x20003
    s_add_u32 s{sRB}, s10, s11
    s_bfe_u32 s10, s2, 0x20001
    s_lshl_b32 s10, s10, 3
    s_lshr_b32 s11, s2, 5
    s_add_u32 s{sCG}, s10, s11
    v_readfirstlane_b32 s{sW}, v{vT}
    v_lshrrev_b32 v{vT}, 4, v{vL}            ; i>>4
    v_bfe_u32 v{vT+1}, v{vL}, 3, 1           ; (i>>3)&1
    v_lshl_add_u32 v{vT+1}, v{vT+1}, 6, v{vT}   ; (i>>4) + 64*((i>>3)&1)
    v_and_b32 v{vT+2}, 7, v{vL}
    v_xor_b32 v{vT+2}, v{vT+2}, v{vT}        ; chunk
    v_lshlrev_b32 v{vT+2}, 4, v{vT+2}
    v_lshl_add_u32 v{vXa}, v{vT+1}, 10, v{vT+2}
    v_xor_b32 v{vXb}, 64, v{vXa}
    s_lshr_b32 s10, s{sRB}, 2
    s_lshl_b32 s10, s10, 14
    s_and_b32 s11, s{sRB}, 3
    s_lshl_b32 s11, s11, 19
    s_add_u32 s10, s10, s11
    s_lshr_b32 s11, s{sW}, 1
    s_lshl_b32 s11, s11, 17
    s_add_u32 s10, s10, s11
    s_and_b32 s11, s{sW}, 1
    s_lshl_b32 s11, s11, 15
    s_add_u32 s{sXO}, s10, s11
    s_add_u32 s{sXO+1}, s{sXO}, 4096
    s_add_u32 s{sXO+2}, s{sXO}, 8192
    s_add_u32 s{sXO+3}, s{sXO}, 12288
    s_lshl_b32 s10, s{sW}, 12
    s_add_u32 s{sM0X}, s10, {XB}
    s_lshl_b32 s{sM0W}, s{sW}, 10
    s_movk_i32 s70, 3584
    s_mov_b32 s{sB0+2}, 1835008
    s_cmp_ge_u32 s{sCG}, 28
    s_cselect_b32 s70, 512, s70
    s_cselect_b32 s71, 28, 0
    s_cselect_b32 s{sB0+2}, 262144, s{sB0+2}
    s_mov_b32 s{sB1+2}, s{sB0+2}
    s_sub_u32 s71, s{sCG}, s71
    s_lshl_b32 s71, s71, 7
    s_lshl_b32 s{sSTG}, s70, 6
    s_add_u32 s72, s62, 262144
    s_addc_u32 s73, s63, 0
    v_lshrrev_b32 v{vT+1}, 3, v{vL}
    s_lshl_b32 s10, s{sW}, 3
    v_add_u32 v{vT+1}, s10, v{vT+1}
    v_mul_lo_u32 v{vT+1}, v{vT+1}, s70
    v_bfe_u32 v{vT+2}, v{vL}, 1, 2           ; unit' = (i&7)>>1
    v_and_b32 v{vT+3}, 1, v{vT}              ; (i>>4)&1
    v_xor_b32 v{vT+2}, v{vT+2}, v{vT+3}
    v_lshlrev_b32 v{vT+2}, 5, v{vT+2}
    v_and_b32 v{vT+3}, 1, v{vL}
    v_lshl_add_u32 v{vT+2}, v{vT+3}, 4, v{vT+2}
    v_xor_b32 v{vT+3}, 64, v{vT+2}
    v_add3_u32 v{vW0}, v{vT+1}, v{vT+2}, s71
    v_add3_u32 v{vW1}, v{vT+1}, v{vT+3}, s71
    s_mov_b32 s{sWOFF}, 0
    s_mov_b32 s{sX+2}, 2097152
    s_mov_b32 s{sX+3}, 0x20000
    s_mov_b32 s{sB0+3}, 0x20000
    s_mov_b32 s{sB1+3}, 0x20000
    s_waitcnt lgkmcnt(0)
    s_mov_b32 s{sX}, s4
    s_mov_b32 s{sX+1}, s5
    s_cmp_ge_u32 s{sCG}, 28
    s_cselect_b32 s{sB0}, s62, s12
    s_cselect_b32 s{sB0+1}, s63, s13
    s_cselect_b32 s{sB1}, s72, s14
    s_cselect_b32 s{sB1+1}, s73, s15
    ''')
    def dma(stage, idx):
        slot = stage % 3
        if idx < 2:
            e(f's_add_u32 m0, s{sM0W}, {slot*16384 + idx*8192}')
            e(f'buffer_load_dwordx4 v{vW0+idx}, s[{(sB0,sB1)[idx]}:{(sB0,sB1)[idx]+3}], s{sWOFF} offen lds', tag=('st', stage))
            if idx == 1: e(f's_add_u32 s{sWOFF}, s{sWOFF}, s{sSTG}')
        else:
            q = idx - 2
            imm = slot*32768 + q*1024 - 128*stage
            if imm >= 0: e(f's_add_u32 m0, s{sM0X}, {imm}')
            else: e(f's_sub_u32 m0, s{sM0X}, {-imm}')
            off = f' offset:{128*stage}' if stage else ''
            e(f'buffer_load_dwordx4 v{(vXa,vXb)[q&1]}, s[{sX}:{sX+3}], s{sXO+q} offen{off} lds', tag=('st', stage))
    for st in range(3):
        for i in range(6): dma(st, i)
    e(f'''
    v_and_b32 v{vT}, 31, v{vL}               ; n
    v_lshrrev_b32 v{vT+1}, 5, v{vL}          ; hh
    v_bfe_u32 v{vT+2}, v{vL}, 1, 3           ; (n>>1)&7
    v_xor_b32 v{vT+1}, v{vT+1}, v{vT+2}
    v_lshlrev_b32 v{vT+1}, 4, v{vT+1}
    v_lshl_add_u32 v{vT+1}, v{vT}, 7, v{vT+1}
    s_lshr_b32 s10, s{sW}, 1
    s_lshl_b32 s10, s10, 13
    s_add_u32 s10, s10, {XB}
    v_add_u32 v{vXR}, s10, v{vT+1}
    v_xor_b32 v{vXR+1}, 32, v{vXR}
    v_xor_b32 v{vXR+2}, 64, v{vXR}
    v_xor_b32 v{vXR+3}, 96, v{vXR}
    v_add_u32 v{vXR+4}, 0x10000, v{vXR}
    v_add_u32 v{vXR+5}, 0x10000, v{vXR+1}
    v_add_u32 v{vXR+6}, 0x10000, v{vXR+2}
    v_add_u32 v{vXR+7}, 0x10000, v{vXR+3}
    v_bfe_u32 v{vT}, v{vL}, 4, 1             ; isup
    v_lshrrev_b32 v{vT+1}, 5, v{vL}          ; hh
    v_bfe_u32 v{vT+2}, v{vL}, 2, 2           ; r4
    v_lshl_add_u32 v{vT+1}, v{vT+1}, 3, v{vT+2}  ; 8hh + r4
    v_lshlrev_b32 v{vT+1}, 7, v{vT+1}
    v_lshl_add_u32 v{vT+1}, v{vT}, 13, v{vT+1}   ; + isup*8192
    v_bfe_u32 v{vT+2}, v{vL}, 3, 1           ; (r4>>1)&1
    v_lshl_or_b32 v{vT+2}, v{vT}, 1, v{vT+2}
    s_and_b32 s10, s{sW}, 1
    s_lshl_b32 s10, s10, 1
    v_xor_b32 v{vT+2}, s10, v{vT+2}
    v_lshl_add_u32 v{vT+1}, v{vT+2}, 5, v{vT+1}
    v_and_b32 v{vT+2}, 1, v{vL}
    v_lshl_add_u32 v{vT+1}, v{vT+2}, 4, v{vT+1}  ; (c&1)*16
    v_bfe_u32 v{vT+2}, v{vL}, 1, 1
    v_lshl_add_u32 v{vWR}, v{vT+2}, 3, v{vT+1}   ; (c>>1)*8
    v_xor_b32 v{vWR+1}, 32, v{vWR}
    s_mov_b32 s{sWS}, s20
    s_mov_b32 s{sWS+1}, s21
    s_mov_b32 s{sWS+2}, {WS_USED}
    s_mov_b32 s{sWS+3}, 0x20000
    s_mov_b32 s{sWR}, s6
    s_mov_b32 s{sWR+1}, s7
    s_mov_b32 s{sWR+2}, 1052672
    s_mov_b32 s{sWR+3}, 0x20000
    s_mov_b32 s{sWI}, s8
    s_mov_b32 s{sWI+1}, s9
    s_mov_b32 s{sWI+2}, 1052672
    s_mov_b32 s{sWI+3}, 0x20000
    s_mov_b32 s{sWD}, s16
    s_mov_b32 s{sWD+1}, s17
    s_mov_b32 s{sWD+2}, 1835008
    s_mov_b32 s{sWD+3}, 0x20000
    s_mov_b32 s{sGW}, s18
    s_mov_b32 s{sGW+1}, s19
    s_mov_b32 s{sGW+2}, 1024
    s_mov_b32 s{sGW+3}, 0x20000
    ''')
    def reads(T):
        st, ks = T >> 2, T & 3
        slot = st % 3; b = FR + 16*(T & 1)
        for jj in range(2):
            o = slot*16384 + ks*2048
            e(f'ds_read_b64_tr_b16 {vr(b+8+4*jj,2)}, v{vWR+jj} offset:{o}', tag=('fr', T))
            e(f'ds_read_b64_tr_b16 {vr(b+10+4*jj,2)}, v{vWR+jj} offset:{o+512}', tag=('fr', T))
            ee = jj
            a = vXR + ks + (4 if slot == 2 else 0)
            o = (slot*32768 if slot < 2 else 0) + ee*4096
            e(f'ds_read_b128 {vr(b+4*ee,4)}, v{a} offset:{o}', tag=('fr', T))
    def mfma(T, jj, ee):
        b = FR + 16*(T & 1); a = ACC + 32*jj + 16*ee
        c = '0' if T == 0 else vr(a, 16)
        e(f'v_mfma_f32_32x32x16_bf16 {vr(a,16)}, {vr(b+8+4*jj,4)}, {vr(b+4*ee,4)}, {c}')
    def side_loads():
        e(f'''
        s_bfe_u32 s10, s2, 0x10002            ; mhalf
        s_lshl_b32 s10, s10, 3
        s_add_u32 s10, s10, s{sW}             ; m
        s_lshr_b32 s11, s2, 6                 ; w2
        s_lshl_b32 s11, s11, 4
        s_add_u32 s10, s10, s11               ; j2
        s_bfe_u32 s11, s2, 0x30003            ; tile*4+g
        s_lshl_b32 s11, s11, 8                ; 64*(16tile+4g)
        s_add_u32 s10, s10, s11               ; j
        s_mul_i32 s10, s10, 514
        s_and_b32 s11, s2, 3
        s_lshl_b32 s74, s11, 7
        s_add_u32 s10, s10, s74
        v_lshlrev_b32 v{vT}, 1, v{vL}
        s_lshl_b32 s11, s11, 19               ; cq*64*8192
        s_lshr_b32 s74, s2, 2
        s_lshl_b32 s74, s74, 7
        s_add_u32 s11, s11, s74
        s_lshl_b32 s74, s{sW}, 4
        s_add_u32 s11, s11, s74
        s_add_u32 s11, s11, {OFF_WT}
        v_lshlrev_b32 v{vSAd}, 13, v{vL}
        v_add_u32 v{vSAd}, s11, v{vSAd}
        v_lshlrev_b32 v{vSBd}, 4, v{vL}
        ''')
        for r in range(4):
            e(f'buffer_load_ushort v{SA+r}, v{vT}, s[{sWR}:{sWR+3}], s10 offen', tag='side')
            e(f'buffer_load_ushort v{SA+4+r}, v{vT}, s[{sWI}:{sWI+3}], s10 offen', tag='side')
            if r < 3: e(f's_add_u32 s10, s10, 32896')
        e(f'''
        s_cmp_ge_u32 s{sW}, 4
        s_cbranch_scc1 K1_SL_C
        s_lshl_b32 s10, s{sW}, 5
        s_lshr_b32 s11, s2, 3
        s_add_u32 s10, s10, s11
        s_and_b32 s11, s2, 7
        s_mul_i32 s74, s11, 112
        s_add_u32 s74, s74, s10
        s_lshl_b32 s74, s74, 11
        s_add_u32 s74, s74, {OFF_WD}
        s_cmp_ge_u32 s10, 112
        s_cselect_b32 s74, {WS_USED}, s74
        v_add_u32 v{vSBd}, s74, v{vSBd}
        s_lshl_b32 s10, s10, 14
        s_lshl_b32 s11, s11, 7
        s_add_u32 s10, s10, s11
        s_add_u32 s11, s10, 4096
        v_lshrrev_b32 v{vT}, 5, v{vL}
        v_lshlrev_b32 v{vT}, 13, v{vT}
        v_bfe_u32 v{vT+1}, v{vL}, 2, 1
        v_lshl_add_u32 v{vT}, v{vT+1}, 6, v{vT}
        v_bfe_u32 v{vT+1}, v{vL}, 3, 2
        v_lshl_add_u32 v{vT}, v{vT+1}, 4, v{vT}
        v_and_b32 v{vT+1}, 3, v{vL}
        v_lshl_add_u32 v{vT}, v{vT+1}, 2, v{vT}
        ''')
        for j in range(8):
            e(f'buffer_load_dword v{SBr+j}, v{vT}, s[{sWD}:{sWD+3}], s{10 + (j>>2)} offen offset:{(j&3)*1024}', tag='side')
        e(f'''
        s_branch K1_SL_DONE
        K1_SL_C:
        s_lshl_b32 s10, s2, 3
        s_sub_u32 s11, s{sW}, 4
        s_lshl_b32 s11, s11, 1
        s_add_u32 s75, s10, s11               ; p
        s_lshr_b32 s10, s75, 10
        s_lshl_b32 s10, s10, 4
        s_bfe_u32 s11, s75, 0x40002
        s_add_u32 s10, s10, s11               ; 16tile + m
        s_bfe_u32 s11, s75, 0x40006           ; 4t+g
        s_lshl_b32 s11, s11, 7
        s_add_u32 s10, s10, s11
        s_and_b32 s11, s75, 3
        s_lshl_b32 s11, s11, 5
        s_add_u32 s10, s10, s11               ; s
        s_lshl_b32 s10, s10, 10
        s_add_u32 s11, s10, 32768
        v_lshlrev_b32 v{vT}, 4, v{vL}
        buffer_load_dwordx4 {vr(SBr,4)}, v{vT}, s[{sX}:{sX+3}], s10 offen
        buffer_load_dwordx4 {vr(SBr+4,4)}, v{vT}, s[{sX}:{sX+3}], s11 offen
        buffer_load_dwordx4 {vr(SBr+8,4)}, v{vT}, s[{sGW}:{sGW+3}], 0 offen
        K1_SL_DONE:
        ''')
    k.stamp(1)
    if diag: e('s_waitcnt lgkmcnt(0)')
    k.wait(vm=('st', 0)); e('s_barrier')
    k.stamp(2)
    if diag: e('s_waitcnt lgkmcnt(0)')
    reads(0)
    pend = []
    for T in range(32):
        st, ks = T >> 2, T & 3
        if ks == 3 and st < 7:
            if st in (3, 6): k.stamp({3:3, 6:4}[st])
            e('s_waitcnt lgkmcnt(0)')
            k.wait(vm=('st', st+1)); e('s_barrier')
            if st + 3 < 8: pend = [(st+3, i) for i in range(6)]
        if T < 31: reads(T+1)
        k.wait(lg=('fr', T))
        mfma(T, 0, 0)
        if pend: dma(*pend.pop(0))
        mfma(T, 1, 0)
        mfma(T, 0, 1)
        if pend: dma(*pend.pop(0))
        mfma(T, 1, 1)
        if T == 27: side_loads()
    k.vm = []
    k.stamp(5)
    e(f's_cmp_ge_u32 s{sCG}, 28')
    e('s_cbranch_scc1 K1_EP_DFT')
    c0 = -2*math.sqrt(2/math.pi)*math.log2(math.e); c1 = c0*0.044715
    vC0, vC1, vONE = 16, 18, 20
    vHA = 22
    e(f'''
    v_mov_b32 v{vC0}, {f2u(c0):#x}
    v_mov_b32 v{vC0+1}, {f2u(c0):#x}
    v_mov_b32 v{vC1}, {f2u(c1):#x}
    v_mov_b32 v{vC1+1}, {f2u(c1):#x}
    v_mov_b32 v{vONE}, 1.0
    v_mov_b32 v{vONE+1}, 1.0
    s_lshl_b32 s10, s{sRB}, 2
    s_lshr_b32 s11, s{sW}, 1
    s_add_u32 s10, s10, s11
    s_mul_i32 s10, s10, 112
    s_lshl_b32 s11, s{sCG}, 2
    s_add_u32 s10, s10, s11
    s_and_b32 s11, s{sW}, 1
    s_lshl_b32 s11, s11, 1
    s_add_u32 s10, s10, s11
    s_lshl_b32 s10, s10, 11
    v_lshlrev_b32 v{vHA}, 4, v{vL}
    ''')
    for ti, (jj, ee) in enumerate([(0,0),(1,0),(0,1),(1,1)]):
        a = ACC + 32*jj + 16*ee
        t = FR + 16*(ti & 1)
        P = lambda r: vr(r, 2)
        for i in range(0, 8, 2): e(f'v_pk_mul_f32 {P(t+i)}, {P(a+i)}, {P(a+i)}')
        for i in range(0, 8, 2): e(f'v_pk_fma_f32 {P(t+i)}, {P(t+i)}, {P(vC1)}, {P(vC0)}')
        for i in range(0, 8, 2): e(f'v_pk_mul_f32 {P(t+i)}, {P(t+i)}, {P(a+i)}')
        for i in range(8): e(f'v_exp_f32 v{t+i}, v{t+i}')
        for i in range(0, 8, 2): e(f'v_pk_mul_f32 {P(a+i)}, {P(a+i)}, {P(a+8+i)}')
        for i in range(0, 8, 2): e(f'v_pk_add_f32 {P(t+i)}, {P(t+i)}, {P(vONE)}')
        for i in range(8): e(f'v_rcp_f32 v{t+i}, v{t+i}')
        for i in range(0, 8, 2): e(f'v_pk_mul_f32 {P(a+i)}, {P(a+i)}, {P(t+i)}')
        for i in range(0, 8, 2): e(f'v_cvt_pk_bf16_f32 v{t+8+i//2}, v{a+i}, v{a+i+1}')
        e(f'buffer_store_dwordx4 {vr(t+8,4)}, v{vHA}, s[{sWS}:{sWS+3}], s10 offen offset:{jj*2048+ee*1024}{st_mod}')
    e('s_waitcnt vmcnt(4)')
    e('s_branch K1_SIDE')
    k.raw('K1_EP_DFT:')
    e('s_nop 10')
    e(f'''
    s_sub_u32 s10, s{sCG}, 28
    s_lshl_b32 s10, s10, 1
    s_and_b32 s11, s{sW}, 1
    s_add_u32 s10, s10, s11
    s_lshl_b32 s10, s10, 18
    s_lshl_b32 s11, s{sRB}, 10
    s_add_u32 s10, s10, s11
    s_lshr_b32 s11, s{sW}, 1
    s_lshl_b32 s11, s11, 8
    s_add_u32 s10, s10, s11
    s_add_u32 s10, s10, {OFF_Y}
    v_lshrrev_b32 v{vT}, 5, v{vL}
    v_lshlrev_b32 v{vT}, 16, v{vT}
    v_and_b32 v{vT+1}, 31, v{vL}
    v_lshl_add_u32 v{vT}, v{vT+1}, 3, v{vT}
    ''')
    for jj in range(2):
        for r in range(8):
            t = FR + 2*(jj*8 + r)
            for ee in range(2):
                a = ACC + 32*jj + 16*ee
                e(f'v_cvt_pk_bf16_f32 v{t+ee}, v{a+r}, v{a+8+r}')
            e(f'buffer_store_dwordx2 {vr(t,2)}, v{vT}, s[{sWS}:{sWS+3}], s10 offen{st_mod}')
            e(f's_add_u32 s10, s10, {8192 if r < 7 else 8192*9}')
    e(f'''
    s_cmp_lg_u32 s2, 255
    s_cbranch_scc1 K1_NOA2
    ; j = 16(w>>1) + m + 64(16(w&1) + 4g + r)
    s_lshr_b32 s10, s{sW}, 1
    s_lshl_b32 s10, s10, 4
    s_and_b32 s11, s{sW}, 1
    s_lshl_b32 s11, s11, 10
    s_add_u32 s10, s10, s11
    s_mul_i32 s10, s10, 514
    s_add_u32 s10, s10, 512
    v_lshrrev_b32 v{vT}, 4, v{vL}
    v_and_b32 v{vT+1}, 15, v{vL}
    v_lshl_add_u32 v{vT}, v{vT}, 8, v{vT+1}
    v_mul_u32_u24 v{vT}, 514, v{vT}
    ''')
    for r in range(4):
        e(f'buffer_load_ushort v{ACC+r}, v{vT}, s[{sWR}:{sWR+3}], s10 offen')
        e(f'buffer_load_ushort v{ACC+4+r}, v{vT}, s[{sWI}:{sWI+3}], s10 offen')
        if r < 3: e(f's_add_u32 s10, s10, 32896')
    e(f'''
    s_lshl_b32 s10, s{sW}, 10
    s_add_u32 s10, s10, {OFF_WT + 256*8192}
    v_lshlrev_b32 v{vT}, 4, v{vL}
    s_waitcnt vmcnt(0)
    ''')
    for r in range(4): e(f'v_lshl_or_b32 v{ACC+r}, v{ACC+4+r}, 16, v{ACC+r}')
    e(f'buffer_store_dwordx4 {vr(ACC,4)}, v{vT}, s[{sWS}:{sWS+3}], s10 offen{st_mod}')
    e('K1_NOA2:')
    e('s_waitcnt vmcnt(16)')
    k.raw('K1_SIDE:')
    k.stamp(6)
    for r in range(4): e(f'v_lshl_or_b32 v{SA+r}, v{SA+4+r}, 16, v{SA+r}')
    e(f'buffer_store_dwordx4 {vr(SA,4)}, v{vSAd}, s[{sWS}:{sWS+3}], 0 offen{st_mod}')
    e(f'''
    s_cmp_ge_u32 s{sW}, 4
    s_cbranch_scc1 K1_SF_C
    s_mov_b32 s10, 0x05040100
    s_mov_b32 s11, 0x07060302
    ''')
    o = ACC + 16
    for q in range(4):
        e(f'v_perm_b32 v{o+q}, v{SBr+2*q+1}, v{SBr+2*q}, s10')
        e(f'v_perm_b32 v{o+4+q}, v{SBr+2*q+1}, v{SBr+2*q}, s11')
    e(f'buffer_store_dwordx4 {vr(o,4)}, v{vSBd}, s[{sWS}:{sWS+3}], 0 offen{st_mod}')
    e(f'buffer_store_dwordx4 {vr(o+4,4)}, v{vSBd}, s[{sWS}:{sWS+3}], 0 offen offset:1024{st_mod}')
    k.dump_stamps(sWS, sW, 0xF00000, 24)
    e('s_endpgm')
    k.raw('K1_SF_C:')
    u = ACC + 16
    for q in range(4):
        e(f'v_lshlrev_b32 v{u+2*q}, 16, v{SBr+8+q}')
        e(f'v_and_b32 v{u+2*q+1}, 0xffff0000, v{SBr+8+q}')
    for row in range(2):
        sacc = u + 10 + row
        for q in range(4):
            e(f'v_lshlrev_b32 v{u+8}, 16, v{SBr+4*row+q}')
            e(f'v_and_b32 v{u+9}, 0xffff0000, v{SBr+4*row+q}')
            if q == 0: e(f'v_mul_f32 v{sacc}, v{u+8}, v{u+2*q}')
            else: e(f'v_fmac_f32 v{sacc}, v{u+8}, v{u+2*q}')
            e(f'v_fmac_f32 v{sacc}, v{u+9}, v{u+2*q+1}')
    for mod in ('quad_perm:[1,0,3,2]', 'quad_perm:[2,3,0,1]', 'row_half_mirror', 'row_mirror'):
        for row in range(2):
            sacc = u + 10 + row
            e(f'v_add_f32_dpp v{sacc}, v{sacc}, v{sacc} {mod} row_mask:0xf bank_mask:0xf')
    for row in range(2):
        sacc = u + 10 + row
        for q in range(1, 4): e(f'v_readlane_b32 s{76+4*row+q}, v{sacc}, {16*q}')
    for q in range(1, 4):
        for row in range(2):
            sacc = u + 10 + row
            e(f'v_add_f32 v{sacc}, s{76+4*row+q}, v{sacc}')
    for row in range(2): e(f'v_mul_f32 v{u+10+row}, {f2u(-math.log2(math.e)):#x}, v{u+10+row}')
    for row in range(2): e(f'v_exp_f32 v{u+10+row}, v{u+10+row}')
    for row in range(2): e(f'v_add_f32 v{u+10+row}, 1.0, v{u+10+row}')
    for row in range(2): e(f'v_rcp_f32 v{u+10+row}, v{u+10+row}')
    e(f'''
    s_lshl_b32 s10, s75, 2
    s_add_u32 s10, s10, {OFF_G}
    s_lshl_b32 s11, s2, 6
    s_add_u32 s11, s11, {OFF_FL}
    v_mov_b32 v{u}, 0
    v_cmp_eq_u32 vcc, 0, v{vL}
    s_and_saveexec_b64 s[74:75], vcc
    buffer_store_dwordx2 {vr(u+10,2)}, v{u}, s[{sWS}:{sWS+3}], s10 offen{st_mod}
    buffer_store_dword v{u}, v{u}, s[{sWS}:{sWS+3}], s11 offen{st_mod}
    ''')
    k.dump_stamps(sWS, sW, 0xF00000, 24)
    e('K1_END:\ns_endpgm')
    return k.text(), kdesc(name, NV, 100)

def gen_table():
    import numpy as np
    from model import f32_to_bf16
    c = f32_to_bf16(np.cos(2*np.pi*np.arange(512)/512).astype(np.float32))
    c[128] = 0; c[384] = 0
    L = []
    for i in range(512): L.append(f'.set tc{i}, {int(c[i]):#x}')
    L.append('''.altmacro
.macro TE i
.short tc\\i
.endm
.p2align 8
.type dft_tab,@object
dft_tab:
.set td, 0
.rept 512
.set tk, 0
.rept 256
TE %(tk & 511)
.set tk, tk + td
.endr
.set td, td + 1
.endr
.set td, 0
.rept 512
TE %((td & 1) * 256)
.set tk, td + 128
.rept 255
TE %(tk & 511)
.set tk, tk + td
.endr
.set td, td + 1
.endr
.size dft_tab, 524288
.noaltmacro''')
    return '\n'.join(L) + '\n'
```

```python
from asmlib import *
from model import OFF_H, OFF_Y, OFF_Z, OFF_WT, OFF_WD, OFF_G, OFF_FL, WS_USED
import math, struct
def f2u(f): return struct.unpack('<I', struct.pack('<f', f))[0]
def fl(f):
    inl = {0.0:'0', 0.5:'0.5', 1.0:'1.0', 2.0:'2.0', 4.0:'4.0'}
    return inl.get(f, f'{f2u(f):#x}')

L_EX = 131072
L_CNT = L_EX + 16384
K2_LDS = L_CNT + 64

def gen_k2(name, mode, depth=7, diag=False):
    k = Kern(); e = k.e; k.diag = diag
    N = name.upper().replace('_KERNEL','')
    vL, vLO = 1, 2
    vT = 4
    sWS, sOUT = 24, 28
    sW, sMT, sNT, sWA = 32, 33, 34, 35
    sc1 = ' sc1' if mode == 'merged' else ''
    exb = L_EX if mode != 'fft' else 0
    k.raw(f'.globl {name}\n.p2align 8\n.type {name},@function\n{name}:')
    e(f'''
    s_cmp_ge_u32 s2, 256
    s_cbranch_scc1 {N}_END
    s_load_dwordx2 s[4:5], s[0:1], 64
    s_load_dwordx2 s[6:7], s[0:1], 80
    ''')
    for i in range(7): k.stamp(i)
    e(f'''
    v_lshrrev_b32 v{vT}, 6, v0
    v_and_b32 v{vL}, 63, v0
    s_and_b32 s10, s2, 7
    s_lshl_b32 s10, s10, 2
    s_bfe_u32 s11, s2, 0x20003
    s_add_u32 s{sMT}, s10, s11
    s_lshr_b32 s{sNT}, s2, 5
    v_readfirstlane_b32 s{sW}, v{vT}
    v_lshlrev_b32 v{vLO}, 4, v{vL}
    s_mov_b32 s{sWS+2}, {WS_USED}
    s_mov_b32 s{sWS+3}, 0x20000
    s_mov_b32 s{sOUT+2}, 2097152
    s_mov_b32 s{sOUT+3}, 0x20000
    s_and_b32 s{sWA}, s{sW}, 3
    s_waitcnt lgkmcnt(0)
    s_mov_b32 s{sWS}, s6
    s_mov_b32 s{sWS+1}, s7
    s_mov_b32 s{sOUT}, s4
    s_mov_b32 s{sOUT+1}, s5
    ''')
    ACC = 16
    vG = 80
    def load_g():
        e(f'''
        v_and_b32 v{vT}, 31, v{vL}
        v_lshlrev_b32 v{vT}, 3, v{vT}
        s_lshl_b32 s10, s{sMT}, 8
        s_add_u32 s10, s10, {OFF_G}
        ''')
        e(f'buffer_load_dwordx2 {vr(vG,2)}, v{vT}, s[{sWS}:{sWS+3}], s10 offen', tag='g')
    if mode != 'fft':
        e(f's_cmp_ge_u32 s{sW}, 4')
        e(f's_cbranch_scc1 {N}_A')
        RING = 84
        sH, sD = 40, 41
        e(f'''
        s_setprio 1
        s_mul_i32 s10, s{sWA}, 28
        s_mul_i32 s{sH}, s{sMT}, 112
        s_add_u32 s{sH}, s{sH}, s10
        s_lshl_b32 s{sH}, s{sH}, 11
        s_mul_i32 s{sD}, s{sNT}, 112
        s_add_u32 s{sD}, s{sD}, s10
        s_lshl_b32 s{sD}, s{sD}, 11
        s_add_u32 s{sD}, s{sD}, {OFF_WD}
        ''')
        def ld(s):
            r = RING + 16*(s % depth); o = 2048*(s & 1)
            e(f'buffer_load_dwordx4 {vr(r,4)}, v{vLO}, s[{sWS}:{sWS+3}], s{sD} offen offset:{o}', tag=('s', s))
            e(f'buffer_load_dwordx4 {vr(r+8,4)}, v{vLO}, s[{sWS}:{sWS+3}], s{sH} offen offset:{o}', tag=('s', s))
            e(f'buffer_load_dwordx4 {vr(r+12,4)}, v{vLO}, s[{sWS}:{sWS+3}], s{sH} offen offset:{o+1024}', tag=('s', s))
            e(f'buffer_load_dwordx4 {vr(r+4,4)}, v{vLO}, s[{sWS}:{sWS+3}], s{sD} offen offset:{o+1024}', tag=('s', s))
            if s & 1:
                e(f's_add_u32 s{sH}, s{sH}, 4096')
                e(f's_add_u32 s{sD}, s{sD}, 4096')
        ld(0); ld(1)
        if mode == 'merged': e('s_barrier')
        for s in range(2, depth-1): ld(s)
        for s in range(28):
            if s + depth - 1 < 28: ld(s + depth - 1)
            if s + depth - 1 == 28: load_g()
            k.wait(vm=('s', s))
            if s in (0, 7, 14, 21): k.stamp(1 + s//7)
            r = RING + 16*(s % depth)
            for dt, ee in ((0,0),(0,1),(1,1),(1,0)):
                a = ACC + 32*dt + 16*ee
                e(f'v_mfma_f32_32x32x16_bf16 {vr(a,16)}, {vr(r+4*dt,4)}, {vr(r+8+4*ee,4)}, {"0" if s == 0 else vr(a,16)}')
        k.wait(vm='g')
        k.stamp(5)
        e(f'v_sub_f32 v{vG}, 1.0, v{vG}')
        e(f'v_sub_f32 v{vG+1}, 1.0, v{vG+1}')
        k.pad()
        e(f's_branch {N}_RED')
        k.raw(f'{N}_A:')
        k.vm = []; k.lg = []
    if mode != 'g2':
        DY = 84
        WT = 116
        FA, FB = 124, 140
        GA, GB = 156, 172
        T1C, T1S, T2C, T2S = 188, 196, 204, 212
        A1, A2 = 16, 32
        PK = 48
        WU = 56
        TM = 72
        SAVE = 220
        sK, sSEL, sPASS, sWC = 42, 43, 44, 45
        vEX = 3
        if mode == 'merged':
            e(f'''
            v_mov_b32 v{vT}, {L_CNT}
            v_mov_b32 v{vT+2}, 0
            v_mov_b32 v{vT+3}, 0
            ds_write_b64 v{vT}, {vr(vT+2,2)}
            ''')
        e(f'''
        s_mov_b32 s{sPASS}, 0
        s_mov_b32 s{sWC}, s2
        s_mov_b32 s{sSEL}, 0x03020100
        s_cmp_eq_u32 s2, 0
        s_cselect_b32 s{sSEL}, 0x0c0c0100, s{sSEL}
        s_lshl_b32 s{sK}, s2, 13
        ''')
        def f2_loads():
            e(f's_add_u32 s10, s{sK}, {OFF_Y}')
            e(f's_add_u32 s11, s10, 4096')
            for tile in range(2):
                for t in range(4):
                    e(f'buffer_load_dwordx4 {vr(DY+16*tile+4*t,4)}, v{vLO}, s[{sWS}:{sWS+3}], s{10+tile} offen offset:{t*1024}', tag='y')
            e(f'''
            s_lshl_b32 s10, s{sWC}, 13
            s_lshl_b32 s11, s{sWA}, 11
            s_add_u32 s10, s10, s11
            s_add_u32 s10, s10, {OFF_WT}
            ''')
            for tile in range(2):
                e(f'buffer_load_dwordx4 {vr(WT+4*tile,4)}, v{vLO}, s[{sWS}:{sWS+3}], s10 offen offset:{tile*1024}', tag='w')
        f2_loads()
        if mode == 'merged':
            e('s_waitcnt lgkmcnt(0)')
            e('s_barrier')
        vM, vG4, vB, vTH0 = vT, vT+1, vT+2, vT+3
        e(f'''
        v_and_b32 v{vM}, 15, v{vL}
        v_lshrrev_b32 v{vG4}, 4, v{vL}
        v_lshlrev_b32 v{vG4}, 2, v{vG4}
        s_lshl_b32 s10, s{sWA}, 4
        v_add_u32 v{vT+4}, s10, v{vM}        ; 16w+m
        v_add_u32 v{vT+5}, s10, v{vG4}       ; 16w+4g
        v_cvt_f32_u32 v{vM}, v{vM}
        v_cvt_f32_u32 v{vG4}, v{vG4}
        v_cvt_f32_u32 v{vT+4}, v{vT+4}
        v_cvt_f32_u32 v{vT+5}, v{vT+5}
        ''')
        def angles(dst, base, th0, ks, fract=True):
            for i, kk in enumerate(ks):
                if kk == 0: e(f'v_mov_b32 v{dst+i}, v{th0}')
                else: e(f'v_fmamk_f32 v{dst+i}, v{base}, {f2u(float(kk)):#x}, v{th0}')
            if fract:
                for i in range(len(ks)): e(f'v_fract_f32 v{dst+i}, v{dst+i}')
        def consts(ra, rb, n):
            for i in range(n): e(f'v_sin_f32 v{TM+4+i}, v{TM+i}')
            for i in range(n): e(f'v_cos_f32 v{TM+i}, v{TM+i}')
            for i in range(n): e(f'v_cvt_pk_bf16_f32 v{ra+i}, v{TM+i}, v{TM+4+i}')
            for i in range(n): e(f'v_cvt_pk_bf16_f32 v{rb+i}, -v{TM+4+i}, v{TM+i}')
        e(f'v_mul_f32 v{vB}, {fl(1/64)}, v{vT+4}')
        e(f'v_mul_f32 v{vTH0}, v{vB}, v{vG4}')
        for t in range(4):
            angles(TM, vB, vTH0, [16*t+i for i in range(4)])
            consts(FA+4*t, FB+4*t, 4)
        e(f'v_mul_f32 v{vB}, {fl(1/2048)}, v{vT+4}')
        e(f'v_mul_f32 v{vTH0}, v{vB}, v{vG4}')
        angles(T1C, vB, vTH0, [0,1,2,3,16,17,18,19], fract=False)
        for i in range(8): e(f'v_sin_f32 v{T1S+i}, v{T1C+i}')
        for i in range(8): e(f'v_cos_f32 v{T1C+i}, v{T1C+i}')
        for tile in range(2):
            if tile == 0: e(f'v_mul_f32 v{vB}, {fl(1/32)}, v{vM}')
            else: e(f'v_add_f32 v{vB}, 0.5, v{vB}')
            e(f'v_mul_f32 v{vTH0}, v{vB}, v{vG4}')
            for ks in range(2):
                angles(TM, vB, vTH0, [16*ks+i for i in range(4)])
                consts(GA+8*tile+4*ks, GB+8*tile+4*ks, 4)
        for tile in range(2):
            if tile == 0: e(f'v_mul_f32 v{vB}, {fl(1/2048)}, v{vM}')
            else: e(f'v_add_f32 v{vB}, {fl(16/2048)}, v{vB}')
            e(f'v_mul_f32 v{vTH0}, v{vB}, v{vT+5}')
            angles(T2C+4*tile, vB, vTH0, [0,1,2,3], fract=False)
        for i in range(8): e(f'v_sin_f32 v{T2S+i}, v{T2C+i}')
        for i in range(8): e(f'v_cos_f32 v{T2C+i}, v{T2C+i}')
        e(f's_lshl_b32 s10, s{sWA}, 11')
        e(f's_add_u32 s10, s10, {exb}')
        e(f'v_add_u32 v{vEX}, s10, v{vLO}')
        e(f'v_add_u32 v{vT+6}, {exb}, v{vLO}') if exb else e(f'v_mov_b32 v{vT+6}, v{vLO}')
        vEXR = vT+6
        k.stamp(1)
        if diag: e('s_waitcnt lgkmcnt(0)')
        k.raw(f'{N}_PASS:')
        k.wait(vm='y')
        e(f's_cmp_lg_u32 s2, 0')
        e(f's_cbranch_scc1 {N}_NOSEL')
        for i in range(32): e(f'v_perm_b32 v{DY+i}, v{DY+i}, v{DY+i}, s{sSEL}')
        k.pad()
        k.raw(f'{N}_NOSEL:')
        M16 = 'v_mfma_f32_16x16x32_bf16'
        P = lambda r: vr(r, 2)
        def cmul_tw(acc, C, S_, out):
            for tile in range(2):
                re, im = acc+8*tile, acc+8*tile+4
                for h in (0, 2):
                    e(f'v_pk_mul_f32 {P(TM+h)}, {P(im+h)}, {P(S_+4*tile+h)}')
                    e(f'v_pk_mul_f32 {P(TM+4+h)}, {P(re+h)}, {P(S_+4*tile+h)}')
                for h in (0, 2):
                    e(f'v_pk_fma_f32 {P(TM+h)}, {P(re+h)}, {P(C+4*tile+h)}, {P(TM+h)}')
                    e(f'v_pk_fma_f32 {P(TM+4+h)}, {P(im+h)}, {P(C+4*tile+h)}, {P(TM+4+h)} neg_lo:[0,0,1] neg_hi:[0,0,1]')
                for r in range(4): e(f'v_cvt_pk_bf16_f32 v{out+4*tile+r}, v{TM+r}, v{TM+4+r}')
        for tile in range(2):
            for t in range(4):
                for c, F in ((0, FA), (1, FB)):
                    a = A1+8*tile+4*c
                    e(f'{M16} {vr(a,4)}, {vr(DY+16*tile+4*t,4)}, {vr(F+4*t,4)}, {"0" if t == 0 else vr(a,4)}')
        k.wait(vm='w')
        for i in range(8):
            e(f'v_lshlrev_b32 v{WU+i}, 16, v{WT+i}')
            e(f'v_and_b32 v{WU+8+i}, 0xffff0000, v{WT+i}')
        cmul_tw(A1, T1C, T1S, PK)
        for tile in range(2):
            for ks in range(2):
                for c, F in ((0, GA), (1, GB)):
                    a = A2+8*tile+4*c
                    e(f'{M16} {vr(a,4)}, {vr(F+8*tile+4*ks,4)}, {vr(PK+4*ks,4)}, {"0" if ks == 0 else vr(a,4)}')
        for tile in range(2):
            re, im = A2+8*tile, A2+8*tile+4
            wr_, wi_ = WU+4*tile, WU+8+4*tile
            for h in (0, 2):
                e(f'v_pk_mul_f32 {P(TM+h)}, {P(im+h)}, {P(wi_+h)}')
                e(f'v_pk_mul_f32 {P(TM+4+h)}, {P(re+h)}, {P(wi_+h)}')
            for h in (0, 2):
                e(f'v_pk_fma_f32 {P(TM+h)}, {P(re+h)}, {P(wr_+h)}, {P(TM+h)} neg_lo:[0,0,1] neg_hi:[0,0,1]')
                e(f'v_pk_fma_f32 {P(TM+4+h)}, {P(im+h)}, {P(wr_+h)}, {P(TM+4+h)}')
            for r in range(4): e(f'v_cvt_pk_bf16_f32 v{PK+4*tile+r}, v{TM+4+r}, v{TM+r}')
        for tile in range(2):
            for ks in range(2):
                for c, F in ((0, GA), (1, GB)):
                    a = A1+8*tile+4*c
                    e(f'{M16} {vr(a,4)}, {vr(PK+4*ks,4)}, {vr(F+8*tile+4*ks,4)}, {"0" if ks == 0 else vr(a,4)}')
        cmul_tw(A1, T2C, T2S, PK)
        e(f'ds_write_b128 v{vEX}, {vr(PK,4)}')
        e(f'ds_write_b128 v{vEX}, {vr(PK+4,4)} offset:1024')
        e('s_waitcnt lgkmcnt(0)')
        if mode == 'fft':
            e('s_barrier')
        else:
            e(f'''
            v_mov_b32 v{TM}, {L_CNT}
            v_mov_b32 v{TM+1}, 1
            s_mov_b64 s[46:47], exec
            s_mov_b64 exec, 1
            ds_add_u32 v{TM}, v{TM+1}
            s_mov_b64 exec, s[46:47]
            s_lshl_b32 s10, s{sPASS}, 2
            s_add_u32 s10, s10, 4
            {N}_SPIN1:
            ds_read_b32 v{TM+1}, v{TM}
            s_waitcnt lgkmcnt(0)
            v_readfirstlane_b32 s11, v{TM+1}
            s_cmp_lt_u32 s11, s10
            s_cbranch_scc1 {N}_SPIN1
            ''')
        for t in range(4):
            for tile in range(2):
                e(f'ds_read_b128 {vr(DY+16*tile+4*t,4)}, v{vEXR} offset:{t*2048+tile*1024}', tag=('x', t, tile))
        for t in range(4):
            for tile in range(2):
                k.wait(lg=('x', t, tile))
                for c, F in ((0, FA), (1, FB)):
                    a = A2+8*tile+4*c
                    e(f'{M16} {vr(a,4)}, {vr(F+4*t,4)}, {vr(DY+16*tile+4*t,4)}, {"0" if t == 0 else vr(a,4)}')
        k.pad()
        e(f's_cmp_lg_u32 s2, 0')
        e(f's_cbranch_scc1 {N}_OUT')
        e(f's_cmp_eq_u32 s{sPASS}, 0')
        e(f's_cbranch_scc0 {N}_P1')
        for tile in range(2):
            for r in range(4): e(f'v_mov_b32 v{SAVE+4*tile+r}, v{A2+8*tile+4+r}')
        e(f'''
        s_mov_b32 s{sPASS}, 1
        s_movk_i32 s{sWC}, 256
        s_mov_b32 s{sSEL}, 0x0c0c0302
        v_add_u32 v{vEX}, 8192, v{vEX}
        v_add_u32 v{vEXR}, 8192, v{vEXR}
        ''')
        f2_loads()
        e(f's_branch {N}_PASS')
        k.raw(f'{N}_P1:')
        for tile in range(2):
            for r in range(4):
                e(f'v_mov_b32 v{A2+8*tile+r}, v{A2+8*tile+4+r}')
                e(f'v_mov_b32 v{A2+8*tile+4+r}, v{SAVE+4*tile+r}')
        k.raw(f'{N}_OUT:')
        k.stamp(2)
        k.vm = []
        e(f'''
        s_lshl_b32 s10, s{sWA}, 10
        s_add_u32 s10, s10, s{sK}
        s_add_u32 s10, s10, {OFF_Z}
        s_add_u32 s11, s10, 4096
        ''')
        for tile in range(2):
            for r in range(4): e(f'v_cvt_pk_bf16_f32 v{PK+4*tile+r}, v{A2+8*tile+4+r}, v{A2+8*tile+r}')
            e(f'buffer_store_dwordx4 {vr(PK+4*tile,4)}, v{vLO}, s[{sWS}:{sWS+3}], s{10+tile} offen{sc1}')
        if mode == 'fft':
            e(f'{N}_END:\ns_endpgm')
            return k.text(), kdesc(name, 232, 64)
    FI = 84
    ZF = 148
    TM = 212
    vB, vTH0 = vT+2, vT+3
    def finv_setup():
        e(f'''
        v_bfe_u32 v{vT}, v{vL}, 2, 1
        v_lshlrev_b32 v{vT}, 5, v{vT}
        v_bfe_u32 v{vT+1}, v{vL}, 3, 2
        v_lshl_add_u32 v{vT}, v{vT+1}, 3, v{vT}
        v_and_b32 v{vT+1}, 3, v{vL}
        v_lshl_add_u32 v{vT}, v{vT+1}, 1, v{vT}
        s_lshl_b32 s10, s{sNT}, 6
        v_add_u32 v{vT}, s10, v{vT}
        v_cvt_f32_u32 v{vT}, v{vT}
        v_lshrrev_b32 v{vT+1}, 5, v{vL}
        v_lshlrev_b32 v{vT+1}, 2, v{vT+1}
        s_lshl_b32 s10, s{sWA}, 6
        v_add_u32 v{vT+1}, s10, v{vT+1}
        v_cvt_f32_u32 v{vT+1}, v{vT+1}
        ''')
    def finv_dt(dt):
        if dt == 0: e(f'v_mul_f32 v{vB}, {fl(1/512)}, v{vT}')
        else: e(f'v_add_f32 v{vB}, {fl(1/512)}, v{vB}')
        e(f'v_mul_f32 v{vTH0}, v{vB}, v{vT+1}')
        for st in range(8):
            for i in range(4):
                kk = 8*st + i
                if kk == 0: e(f'v_mov_b32 v{TM+i}, v{vTH0}')
                else: e(f'v_fmamk_f32 v{TM+i}, v{vB}, {f2u(float(kk)):#x}, v{vTH0}')
            for i in range(4): e(f'v_fract_f32 v{TM+i}, v{TM+i}')
            for i in range(4): e(f'v_sin_f32 v{TM+4+i}, v{TM+i}')
            for i in range(4): e(f'v_cos_f32 v{TM+i}, v{TM+i}')
            for i in range(4): e(f'v_cvt_pk_bf16_f32 v{FI+8*st+4*dt+i}, v{TM+i}, -v{TM+4+i}')
    finv_setup()
    finv_dt(0)
    if mode == 'merged':
        e(f'''
        s_waitcnt vmcnt(0)
        v_mov_b32 v{TM}, {L_CNT+4}
        v_mov_b32 v{TM+1}, 1
        v_mov_b32 v{TM+3}, 0
        s_mov_b64 s[46:47], exec
        s_mov_b64 exec, 1
        ds_add_rtn_u32 v{TM+2}, v{TM}, v{TM+1}
        s_waitcnt lgkmcnt(0)
        v_readfirstlane_b32 s11, v{TM+2}
        s_lshl_b32 s10, s2, 6
        s_add_u32 s10, s10, {OFF_FL}
        s_cmp_lg_u32 s11, 3
        s_cbranch_scc1 {N}_NOFLAG
        buffer_store_dword v{TM+1}, v{TM+3}, s[{sWS}:{sWS+3}], s10 offen sc1
        {N}_NOFLAG:
        s_mov_b64 exec, s[46:47]
        ''')
        k.vm = []
    finv_dt(1)
    e(f'''
    s_cmp_lg_u32 s{sWA}, 0
    s_cbranch_scc1 {N}_NOK0
    s_mov_b64 s[46:47], exec
    s_mov_b32 exec_hi, 0
    v_mov_b32 v{FI}, 0x3f003f00
    v_mov_b32 v{FI+4}, 0xbf003f00
    s_mov_b64 exec, s[46:47]
    {N}_NOK0:
    ''')
    k.stamp(3)
    load_g()
    e(f'''
    v_lshrrev_b32 v{vT+4}, 5, v{vL}
    v_lshlrev_b32 v{vT+4}, 15, v{vT+4}
    v_add_u32 v{vT+4}, v{vT+4}, v{vT}
    s_lshl_b32 s12, s{sWA}, 19
    s_lshl_b32 s11, s{sMT}, 8
    s_add_u32 s12, s12, s11
    s_add_u32 s12, s12, {OFF_Z}
    ''')
    if mode == 'merged':
        e(f'''
        v_lshlrev_b32 v{vT+5}, 6, v{vL}
        s_lshl_b32 s10, s{sWA}, 12
        s_add_u32 s10, s10, {OFF_FL}
        s_movk_i32 s13, 0x7fff
        {N}_POLL:
        buffer_load_dword v{TM}, v{vT+5}, s[{sWS}:{sWS+3}], s10 offen sc1
        s_waitcnt vmcnt(0)
        v_cmp_eq_u32 vcc, 0, v{TM}
        s_cbranch_vccz {N}_GO
        s_sleep 4
        s_sub_u32 s13, s13, 1
        s_cmp_lg_u32 s13, 0
        s_cbranch_scc1 {N}_POLL
        {N}_GO:
        ''')
    k.stamp(4)
    for st in range(8):
        for i in range(4):
            e(f'buffer_load_dwordx2 {vr(ZF+8*st+2*i,2)}, v{vT+4}, s[{sWS}:{sWS+3}], s12 offen{sc1}', tag=('z', st))
            if not (st == 7 and i == 3): e(f's_add_u32 s12, s12, {8192 if i < 3 else 8192*5}')
    for st in range(8):
        k.wait(vm=('z', st))
        z = ZF + 8*st
        e(f'v_swap_b32 v{z+1}, v{z+2}')
        e(f'v_swap_b32 v{z+5}, v{z+6}')
        e(f'v_swap_b32 v{z+2}, v{z+4}')
        e(f'v_swap_b32 v{z+3}, v{z+5}')
        for dt, ee in ((0,0),(1,0),(0,1),(1,1)):
            a = ACC + 32*dt + 16*ee
            e(f'v_mfma_f32_32x32x16_bf16 {vr(a,16)}, {vr(FI+8*st+4*dt,4)}, {vr(z+4*ee,4)}, {"0" if st == 0 else vr(a,16)}')
    k.stamp(5)
    e(f'v_mul_f32 v{vG}, {fl(2.0**-19)}, v{vG}')
    e(f'v_mul_f32 v{vG+1}, {fl(2.0**-19)}, v{vG+1}')
    k.pad()
    k.raw(f'{N}_RED:')
    e(f's_lshl_b32 s10, s{sW}, 14')
    e(f'v_add_u32 v{vT}, s10, v{vLO}')
    for dt in range(2):
        for ee in range(2):
            a = ACC + 32*dt + 16*ee
            for q in range(4):
                for h in (0, 2):
                    e(f'v_pk_mul_f32 {vr(a+4*q+h,2)}, {vr(a+4*q+h,2)}, {vr(vG,2)} op_sel:[0,{ee}] op_sel_hi:[1,{ee}]')
                e(f'ds_write_b128 v{vT}, {vr(a+4*q,4)} offset:{((dt*2+ee)*4+q)*1024}')
    e(f'''
    s_and_b32 s10, s{sW}, 1
    s_lshl_b32 s10, s10, 12
    s_lshr_b32 s11, s{sW}, 1
    s_lshl_b32 s12, s11, 10
    s_add_u32 s12, s12, s10
    v_add_u32 v{vT}, s12, v{vLO}
    v_add_u32 v{vT+1}, 0x10000, v{vT}
    v_and_b32 v{vT+2}, 31, v{vL}
    v_lshrrev_b32 v{vT+3}, 1, v{vT+2}
    v_and_b32 v{vT+2}, 1, v{vT+2}
    v_lshl_add_u32 v{vT+3}, v{vT+2}, 6, v{vT+3}
    v_lshlrev_b32 v{vT+3}, 10, v{vT+3}
    v_lshrrev_b32 v{vT+2}, 5, v{vL}
    v_lshl_add_u32 v{vT+3}, v{vT+2}, 6, v{vT+3}
    s_lshl_b32 s10, s10, 3                 ; e*32*1024
    s_lshl_b32 s11, s11, 4
    s_add_u32 s10, s10, s11
    s_lshr_b32 s11, s{sMT}, 4
    s_lshl_b32 s11, s11, 14
    s_add_u32 s10, s10, s11
    s_and_b32 s11, s{sMT}, 15
    s_lshl_b32 s11, s11, 17
    s_add_u32 s10, s10, s11
    s_lshl_b32 s11, s{sNT}, 7
    s_add_u32 s10, s10, s11
    s_waitcnt lgkmcnt(0)
    s_barrier
    ''')
    k.stamp(6)
    if diag: e('s_waitcnt lgkmcnt(0)')
    R = 84
    for p in range(8):
        for dt in range(2):
            e(f'ds_read_b128 {vr(R+8*p+4*dt,4)}, v{vT + (p>>2)} offset:{(p&3)*16384 + dt*8192}', tag=('r', p))
    for p in range(1, 8):
        k.wait(lg=('r', p))
        for h in range(0, 8, 2):
            e(f'v_pk_add_f32 {vr(R+h,2)}, {vr(R+h,2)}, {vr(R+8*p+h,2)}')
    for r in range(4): e(f'v_cvt_pk_bf16_f32 v{R+8+r}, v{R+r}, v{R+4+r}')
    e(f'buffer_store_dwordx4 {vr(R+8,4)}, v{vT+3}, s[{sOUT}:{sOUT+3}], s10 offen')
    k.dump_stamps(sWS, sW, 0xF10000, 16)
    e(f'{N}_END:\ns_endpgm')
    return k.text(), kdesc(name, 232, 100)
```

```python
import sys
from k1 import *
from k2 import *
HDR = open('gated_mix__spectral_gfnet__glu_gated_geglu__prompt.s.ref').read().split('; Override')[0]
def assemble(kernels, launches):
    s = HDR
    for l in launches: s += l + '\n'
    s += '.amdgcn_target "amdgcn-amd-amdhsa--gfx950"\n.text\n'
    for t, d in kernels: s += t
    s += '.section .rodata,"a"\n'
    for t, d in kernels: s += d
    s += gen_table()
    return s
def gen_empty():
    return '.globl em_kernel\n.p2align 8\n.type em_kernel,@function\nem_kernel:\ns_endpgm\n', kdesc('em_kernel', 8, 16)
def gen_spin(off):
    t = f'''.globl sp_kernel
.p2align 8
.type sp_kernel,@function
sp_kernel:
s_cmp_ge_u32 s2, 1
s_cbranch_scc1 SP_END
s_load_dwordx2 s[4:5], s[0:1], 80
s_waitcnt lgkmcnt(0)
s_add_u32 s4, s4, {off}
s_addc_u32 s5, s5, 0
s_load_dword s6, s[4:5], 0
s_waitcnt lgkmcnt(0)
SP_L:
s_memrealtime s[8:9]
s_waitcnt lgkmcnt(0)
s_sub_u32 s10, s8, s6
s_cmp_lt_u32 s10, 10000
s_cbranch_scc1 SP_L
SP_END:
s_endpgm
'''
    return t, kdesc('sp_kernel', 8, 16)
if __name__ == '__main__':
    DIAG = 'diag' in sys.argv
    var = sys.argv[2] if len(sys.argv) > 2 else 'k3'
    L1 = f'; @launch kernel=k1_kernel grid=(256,1,1) block=(512,1,1) lds={K1_LDS}'
    if var == 'k1':
        ks = [gen_k1(diag=DIAG)]; ls = [L1]
    elif var == 'k3':
        ks = [gen_k1(diag=DIAG), gen_k2('kf_kernel', 'fft'), gen_k2('kg_kernel', 'g2', diag=DIAG)]
        ls = [L1, '; @launch kernel=kf_kernel grid=(256,1,1) block=(256,1,1) lds=16384',
              f'; @launch kernel=kg_kernel grid=(256,1,1) block=(512,1,1) lds={K2_LDS}']
    elif var == 'k2':
        ks = [gen_k1(diag=DIAG), gen_k2('k2_kernel', 'merged', diag=DIAG)]
        ls = [L1, f'; @launch kernel=k2_kernel grid=(256,1,1) block=(512,1,1) lds={K2_LDS}']
    for a in sys.argv:
        if a.startswith('spin='):
            ks.append(gen_spin(int(a[5:], 0))); ls.append('; @launch kernel=sp_kernel grid=(1,1,1) block=(64,1,1) lds=0')
        if a == 'empty_first':
            ks.append(gen_empty()); ls.insert(0, '; @launch kernel=em_kernel grid=(256,1,1) block=(64,1,1) lds=0')
        if a == 'empty_last':
            ks.append(gen_empty()); ls.append('; @launch kernel=em_kernel grid=(256,1,1) block=(64,1,1) lds=0')
    open(sys.argv[1], 'w').write(assemble(ks, ls))
```

```python
import re

TRANS = ('v_exp_f32','v_log_f32','v_rcp_f32','v_rsq_f32','v_sqrt_f32','v_sin_f32','v_cos_f32')

def regs_of(tok):
    tok = tok.strip()
    tok = tok.lstrip('-')
    m = re.fullmatch(r'abs\((.*)\)', tok) or re.fullmatch(r'\|(.*)\|', tok)
    if m: tok = m.group(1)
    m = re.fullmatch(r'([vas])(\d+)', tok)
    if m: return {(m.group(1), int(m.group(2)))}
    m = re.fullmatch(r'([vas])\[(\d+):(\d+)\]', tok)
    if m: return {(m.group(1), i) for i in range(int(m.group(2)), int(m.group(3))+1)}
    if tok in ('vcc','exec','m0','scc'): return {('x', tok)}
    if tok in ('vcc_lo','vcc_hi'): return {('x','vcc')}
    if tok in ('exec_lo','exec_hi'): return {('x','exec')}
    return set()

class Ins:
    def __init__(self, text):
        self.text = text
        t = text.split(';')[0].strip()
        parts = t.split(None, 1)
        self.op = parts[0]
        rest = parts[1] if len(parts) > 1 else ''
        ops = [o.strip() for o in rest.split(',')] if rest else []
        self.mods = ''
        clean = []
        depth_join = []
        for o in ops:
            clean.append(o)
        merged = []
        for o in clean:
            if merged and merged[-1].count('[') > merged[-1].count(']'):
                merged[-1] += ',' + o
            else:
                merged.append(o)
        toks = []
        for o in merged:
            sp = o.split()
            toks.append(sp[0] if sp else '')
            if len(sp) > 1: self.mods += ' ' + ' '.join(sp[1:])
        self.toks = toks
        op = self.op
        self.cls = 'other'
        self.dst = set(); self.src = set(); self.srcC = set(); self.srcAB = set()
        self.passes = 0
        self.store_data = set()
        if op.startswith('v_mfma'):
            self.cls = 'mfma'
            self.dst = regs_of(toks[0]); self.srcAB = regs_of(toks[1]) | regs_of(toks[2]); self.srcC = regs_of(toks[3])
            self.src = self.srcAB | self.srcC
            self.passes = 8 if '32x32x16' in op else 4 if '16x16x32' in op else 16
        elif op.startswith('v_'):
            self.cls = 'trans' if op.replace('_e32','').replace('_e64','') in TRANS else 'valu'
            if op.startswith('v_cmp'):
                self.dst = regs_of(toks[0]); self.src = set().union(*[regs_of(x) for x in toks[1:]])
                if op.startswith('v_cmpx'): self.dst |= {('x','exec')}
            elif op.startswith('v_swap') or op.startswith('v_permlane'):
                self.dst = regs_of(toks[0]) | regs_of(toks[1]); self.src = set(self.dst)
            elif '_co_' in op:
                self.dst = regs_of(toks[0]) | regs_of(toks[1]); self.src = set().union(*[regs_of(x) for x in toks[2:]])
            elif op == 'v_nop':
                pass
            else:
                self.dst = regs_of(toks[0]); self.src = set().union(*[regs_of(x) for x in toks[1:]]) if len(toks) > 1 else set()
                if op.startswith('v_fmac') or op.startswith('v_pk_fmac') or op.startswith('v_writelane') or op.startswith('v_dot2c'): self.src |= self.dst
                if op.startswith('v_cndmask') and len(toks) == 3: self.src |= {('x','vcc')}
            self.dpp = ('row_' in self.mods or 'quad_perm' in self.mods or 'wave_' in self.mods or '_dpp' in op)
        elif op.startswith('buffer_') or op.startswith('global_'):
            self.cls = 'vmem'
            allr = [regs_of(x) for x in toks]
            if op in ('buffer_inv','buffer_wbl2'):
                pass
            elif 'lds' in self.mods.split() or '_lds_' in op:
                self.src = set().union(*allr) | {('x','m0')}
                self.ldsdma = True
            elif 'load' in op:
                self.dst = allr[0]; self.src = set().union(*allr[1:])
            elif op.startswith('buffer_store') or op.startswith('buffer_atomic'):
                self.src = set().union(*allr); self.store_data = allr[0]
                if 'atomic' in op and 'sc0' in self.mods: self.dst = allr[0]
            else:
                self.src = set().union(*allr); self.store_data = allr[1]
        elif op.startswith('ds_'):
            self.cls = 'ds'
            allr = [regs_of(x) for x in toks]
            if 'read' in op or 'rtn' in op or 'permute' in op or 'swizzle' in op:
                self.dst = allr[0]; self.src = set().union(*allr[1:])
            else:
                self.src = set().union(*allr)
        elif op.startswith('s_'):
            self.cls = 'salu'
            if op == 's_nop':
                self.cls = 'nop'
            elif op.startswith('s_cmp') or op.startswith('s_bitcmp') or op.startswith('s_cbranch') or op in ('s_branch','s_barrier','s_waitcnt','s_endpgm','s_setprio','s_sleep'):
                self.src = set().union(*[regs_of(x) for x in toks]) if toks else set()
            else:
                self.dst = regs_of(toks[0]) if toks else set()
                self.src = set().union(*[regs_of(x) for x in toks[1:]]) if len(toks) > 1 else set()
                if 'saveexec' in op: self.dst |= {('x','exec')}
    def states(self):
        if self.cls == 'nop': return int(self.toks[0], 0) + 1
        return 1

def need(p, c):
    n = 0
    pv = p.cls in ('valu','trans')
    cv = c.cls in ('valu','trans')
    vec = lambda s: {r for r in s if r[0] in 'va'}
    sg = lambda s: {r for r in s if r[0] == 's' or r == ('x','vcc')}
    if pv:
        if c.cls == 'mfma' and vec(p.dst) & c.src: n = max(n, 2)
        if c.cls == 'mfma' and ('x','exec') in p.dst: n = max(n, 4)
        if p.cls == 'trans' and (c.cls == 'valu' or c.cls == 'mfma') and p.dst & c.src: n = max(n, 1)
        if c.cls == 'vmem' and sg(p.dst) & c.src: n = max(n, 5)
        if cv and sg(p.dst) & c.src:
            n = max(n, 4 if (c.op.startswith('v_readlane') or c.op.startswith('v_writelane')) else 2)
        if cv and (c.op.startswith('v_readlane') or c.op.startswith('v_readfirstlane')) and vec(p.dst) & c.src: n = max(n, 1)
        if cv and c.op.startswith('v_permlane') and vec(p.dst) & c.src: n = max(n, 2)
        if cv and getattr(c, 'dpp', False) and vec(p.dst) & c.src: n = max(n, 2)
        if cv and getattr(c, 'dpp', False) and ('x','exec') in p.dst: n = max(n, 5)
        if ('x','exec') in p.dst and cv and (c.op.startswith('v_read') or c.op.startswith('v_writelane') or c.op.startswith('v_permlane')): n = max(n, 4)
        if c.cls == 'salu' and sg(p.dst) & c.src: n = max(n, 1)
        if ('op_sel' in p.mods and not p.op.startswith('v_pk_')) or 'sdwa' in p.op or 'dst_sel' in p.mods:
            if cv and p.dst & (c.src | c.dst): n = max(n, 1)
    if p.cls == 'mfma':
        t_rw = {4: 8, 8: 12, 16: 20}[p.passes]
        if c.cls == 'mfma':
            if p.dst & c.srcAB: n = max(n, t_rw)
            if p.dst & c.srcC:
                if not (p.dst == c.srcC and p.passes == c.passes): n = max(n, {4: 6, 8: 10, 16: 18}[p.passes])
            elif p.dst & c.dst:
                n = max(n, {4: 6, 8: 10, 16: 18}[p.passes])
        elif c.cls in ('valu','trans','vmem','ds'):
            if p.dst & (c.src | c.dst): n = max(n, t_rw)
            if cv and p.srcC & c.dst: n = max(n, {4: 3, 8: 7, 16: 15}[p.passes])
    if p.cls == 'salu' and ('x','m0') in p.dst and getattr(c, 'ldsdma', False): n = max(n, 1)
    if p.cls == 'vmem' and len(p.store_data) >= 3 and (p.store_data & c.dst):
        n = max(n, 2 if cv else 1)
    if p.cls == 'ds' and p.op.startswith('ds_write') and cv and len(p.src) >= 4 and (p.src & c.dst):
        n = max(n, 2)
    return n

class Kern:
    def __init__(self):
        self.out = []
        self.hist = []
        self.vm = []
        self.lg = []
        self.nops = 0
    def raw(self, s):
        self.out.append(s)
    def label(self, name, flush=True):
        self.out.append(name + ':')
    def e(self, text, tag=None):
        for line in text.split('\n'):
            line = line.strip()
            if not line or line.startswith(';'):
                if line: self.out.append('    ' + line)
                continue
            if line.endswith(':'):
                self.out.append(line); continue
            ins = Ins(line)
            dist = 0; req = 0
            for p in reversed(self.hist):
                r = need(p, ins) - dist
                if r > req: req = r
                dist += p.states()
                if dist >= 20: break
            while req > 0:
                k = min(req, 16)
                nop = Ins(f's_nop {k-1}')
                self.out.append(f'    s_nop {k-1}'); self.hist.append(nop); req -= k; self.nops += k
            self.out.append('    ' + line)
            self.hist.append(ins)
            if len(self.hist) > 40: self.hist = self.hist[-30:]
            if ins.cls == 'vmem' and ins.op not in ('buffer_inv','buffer_wbl2'): self.vm.append(tag)
            if ins.cls == 'ds': self.lg.append(tag)
            if ins.op == 's_waitcnt':
                m = re.search(r'vmcnt\((\d+)\)', line)
                if m:
                    n = int(m.group(1)); self.vm = self.vm[len(self.vm)-n:] if n < len(self.vm) and n > 0 else ([] if n == 0 else self.vm)
                m = re.search(r'lgkmcnt\((\d+)\)', line)
                if m:
                    n = int(m.group(1)); self.lg = self.lg[len(self.lg)-n:] if n < len(self.lg) and n > 0 else ([] if n == 0 else self.lg)
    def _cnt(self, q, tags):
        if not isinstance(tags, (list, set)): tags = [tags]
        last = -1
        for i, t in enumerate(q):
            if t in tags: last = i
        if last < 0: return None
        return len(q) - 1 - last
    def wait(self, vm=None, lg=None):
        parts = []
        if vm is not None:
            n = self._cnt(self.vm, vm)
            if n is not None: parts.append(f'vmcnt({min(n,63)})')
        if lg is not None:
            n = self._cnt(self.lg, lg)
            if n is not None: parts.append(f'lgkmcnt({min(n,15)})')
        if parts: self.e('s_waitcnt ' + ' '.join(parts))
    def pad(self, n=20):
        dist = 0; req = 0
        for p in reversed(self.hist):
            w = 0
            if p.cls == 'mfma': w = {4: 8, 8: 12, 16: 20}[p.passes]
            elif p.cls in ('valu','trans'): w = 5 if any(r[0] == 's' or r[0] == 'x' for r in p.dst) else 2
            elif p.cls == 'vmem' and len(p.store_data) >= 3: w = 2
            elif p.cls == 'salu' and ('x','m0') in p.dst: w = 1
            req = max(req, w - dist)
            dist += p.states()
            if dist >= 20: break
        while req > 0:
            k = min(req, 16); self.e(f's_nop {k-1}'); req -= k
    diag = False
    STAMP0 = 84
    def stamp(self, i):
        if self.pts and i != 7: return
        if isinstance(self.diag, tuple):
            if i in self.diag:
                j = 2*self.diag.index(i)
                self.e(f's_memtime s[{self.STAMP0+2*j}:{self.STAMP0+2*j+1}]')
                self.e(f's_memrealtime s[{self.STAMP0+2*j+2}:{self.STAMP0+2*j+3}]')
        elif self.diag:
            self.e(f'{"s_memtime" if self.diag == "cyc" else "s_memrealtime"} s[{self.STAMP0+2*i}:{self.STAMP0+2*i+1}]')
    pts = None
    def pt(self, name):
        if self.pts and name in self.pts:
            i = self.pts.index(name)
            self.e(f's_memtime s[{self.STAMP0+2*i}:{self.STAMP0+2*i+1}]')
    def dump_stamps(self, sWS, sW, base, vt, n=8):
        if not self.diag: return
        self.e('s_waitcnt vmcnt(0) lgkmcnt(0)')
        self.stamp(n-1)
        self.e('s_waitcnt lgkmcnt(0)')
        self.e('s_mov_b64 exec, 1')
        for i in range(n): self.e(f'v_mov_b32 v{vt+i}, s{self.STAMP0+2*i}')
        self.e(f's_lshl_b32 s10, s2, 3\ns_add_u32 s10, s10, s{sW}\ns_lshl_b32 s10, s10, 5\ns_add_u32 s10, s10, {base}')
        self.e(f'v_mov_b32 v{vt+8}, 0')
        self.e(f'buffer_store_dwordx4 v[{vt}:{vt+3}], v{vt+8}, s[{sWS}:{sWS+3}], s10 offen')
        self.e(f'buffer_store_dwordx4 v[{vt+4}:{vt+7}], v{vt+8}, s[{sWS}:{sWS+3}], s10 offen offset:16')
    def text(self):
        return '\n'.join(self.out) + '\n'

def vr(a, n=1, f='v'):
    return f'{f}{a}' if n == 1 else f'{f}[{a}:{a+n-1}]'
def sr(a, n=1):
    return vr(a, n, 's')

def kdesc(name, nvgpr, nsgpr=96, accum=None):
    accum = accum if accum is not None else (nvgpr + 3)//4*4
    return f'''.p2align 6
.amdhsa_kernel {name}
  .amdhsa_next_free_vgpr {nvgpr}
  .amdhsa_next_free_sgpr {nsgpr}
  .amdhsa_accum_offset {accum}
  .amdhsa_group_segment_fixed_size 0
  .amdhsa_kernarg_size 88
  .amdhsa_user_sgpr_count 2
  .amdhsa_user_sgpr_kernarg_segment_ptr 1
  .amdhsa_system_sgpr_workgroup_id_x 1
  .amdhsa_float_denorm_mode_32 3
  .amdhsa_float_denorm_mode_16_64 3
.end_amdhsa_kernel
'''
```

```python
from asmlib import *
from model import OFF_H, OFF_Y, OFF_Z, OFF_WT, OFF_WD, OFF_G, OFF_FL, WS_USED
import math, struct

def f2u(f): return struct.unpack('<I', struct.pack('<f', f))[0]

K1_LDS = 147456
XB = 49152
M16 = 'v_mfma_f32_16x16x32_bf16'

def gen_k1(name='k1_kernel', st_mod='', diag=False, pts=None, opt=()):
    k = Kern(); e = k.e; k.diag = diag; k.pts = pts
    vL, vLO = 1, 2
    vXa, vXb, vW = 3, 4, 5
    vXR = 6
    vWR = 10
    vA, vAd, vB, vZ = 12, 13, 14, 15
    vT = 16
    FR = 24
    ACC = 88
    SA = 152
    SA2 = 160
    SB = 168
    SC = 200
    NV = 220
    sX, sB0, sB1, sWS, sWR, sWI, sWD, sGW = 24, 28, 32, 36, 40, 44, 48, 52
    sRB, sCG, sW, sSTG, sWOFF = 56, 57, 58, 59, 60
    sXO = 64
    sM0X, sM0W = 68, 69
    sA, sA2d, sBs, sBd, sCs, sCd, sBon, sP0, sP1 = 74, 75, 76, 77, 78, 79, 80, 81, 82
    k.raw(f'.globl {name}\n.p2align 8\n.type {name},@function\n{name}:')
    e(f'''
    s_cmp_ge_u32 s2, 256
    s_cbranch_scc1 K1_END
    s_load_dwordx4 s[4:7], s[0:1], 0
    s_load_dwordx4 s[12:15], s[0:1], 32
    s_load_dwordx2 s[8:9], s[0:1], 16
    s_load_dwordx4 s[16:19], s[0:1], 48
    s_load_dwordx2 s[20:21], s[0:1], 80
    s_getpc_b64 s[62:63]
    ''')
    k.raw('''    s_add_u32 s62, s62, dft_tab@rel32@lo+4
    s_addc_u32 s63, s63, dft_tab@rel32@hi+12''')
    k.stamp(0)
    e(f'''
    v_lshrrev_b32 v{vT}, 6, v0
    v_and_b32 v{vL}, 63, v0
    s_and_b32 s10, s2, 1
    s_lshl_b32 s10, s10, 2
    s_bfe_u32 s11, s2, 0x20003
    s_add_u32 s{sRB}, s10, s11
    s_bfe_u32 s10, s2, 0x20001
    s_lshl_b32 s10, s10, 3
    s_lshr_b32 s11, s2, 5
    s_add_u32 s{sCG}, s10, s11
    v_readfirstlane_b32 s{sW}, v{vT}
    v_lshrrev_b32 v{vT}, 4, v{vL}            ; i>>4
    v_lshrrev_b32 v{vT+1}, 3, v{vL}          ; i>>3
    v_and_b32 v{vT+2}, 7, v{vL}
    v_xor_b32 v{vT+2}, v{vT+2}, v{vT}        ; chunk
    v_lshlrev_b32 v{vT+2}, 4, v{vT+2}
    v_lshl_add_u32 v{vXa}, v{vT+1}, 10, v{vT+2}
    v_xor_b32 v{vXb}, 64, v{vXa}
    s_lshr_b32 s10, s{sRB}, 2
    s_lshl_b32 s10, s10, 14
    s_and_b32 s11, s{sRB}, 3
    s_lshl_b32 s11, s11, 19
    s_add_u32 s10, s10, s11
    s_lshl_b32 s11, s{sW}, 16
    s_add_u32 s{sXO}, s10, s11
    s_add_u32 s{sXO+1}, s{sXO}, 8192
    s_add_u32 s{sXO+2}, s{sXO}, 32768
    s_add_u32 s{sXO+3}, s{sXO}, 40960
    s_lshl_b32 s10, s{sW}, 12
    s_add_u32 s{sM0X}, s10, {XB}
    s_lshl_b32 s{sM0W}, s{sW}, 10
    s_movk_i32 s70, 3584
    s_mov_b32 s{sB0+2}, 1835008
    s_cmp_ge_u32 s{sCG}, 28
    s_cselect_b32 s70, 512, s70
    s_cselect_b32 s71, 28, 0
    s_cselect_b32 s{sB0+2}, 262144, s{sB0+2}
    s_mov_b32 s{sB1+2}, s{sB0+2}
    s_sub_u32 s71, s{sCG}, s71
    s_lshl_b32 s71, s71, 7
    s_lshl_b32 s{sSTG}, s70, 6
    s_add_u32 s72, s62, 262144
    s_addc_u32 s73, s63, 0
    s_lshl_b32 s10, s{sW}, 3
    v_add_u32 v{vT+1}, s10, v{vT+1}
    v_mul_lo_u32 v{vT+1}, v{vT+1}, s70
    v_bfe_u32 v{vT+2}, v{vL}, 1, 2
    v_and_b32 v{vT+3}, 1, v{vT}
    v_xor_b32 v{vT+2}, v{vT+2}, v{vT+3}
    s_and_b32 s10, s{sW}, 1
    s_lshl_b32 s10, s10, 1
    v_xor_b32 v{vT+2}, s10, v{vT+2}
    v_lshlrev_b32 v{vT+2}, 5, v{vT+2}
    v_and_b32 v{vT+3}, 1, v{vL}
    v_lshl_add_u32 v{vT+2}, v{vT+3}, 4, v{vT+2}
    v_add3_u32 v{vW}, v{vT+1}, v{vT+2}, s71
    s_mov_b32 s{sWOFF}, 0
    s_mov_b32 s{sX+2}, 2097152
    s_mov_b32 s{sX+3}, 0x20000
    s_mov_b32 s{sB0+3}, 0x20000
    s_mov_b32 s{sB1+3}, 0x20000
    s_waitcnt lgkmcnt(0)
    s_mov_b32 s{sX}, s4
    s_mov_b32 s{sX+1}, s5
    s_cmp_ge_u32 s{sCG}, 28
    s_cselect_b32 s{sB0}, s62, s12
    s_cselect_b32 s{sB0+1}, s63, s13
    s_cselect_b32 s{sB1}, s72, s14
    s_cselect_b32 s{sB1+1}, s73, s15
    ''')
    def dma(stage, idx):
        slot = stage % 3
        if idx < 2:
            e(f's_add_u32 m0, s{sM0W}, {slot*16384 + idx*8192}')
            e(f'buffer_load_dwordx4 v{vW}, s[{(sB0,sB1)[idx]}:{(sB0,sB1)[idx]+3}], s{sWOFF} offen lds', tag=('st', stage))
            if idx == 1: e(f's_add_u32 s{sWOFF}, s{sWOFF}, s{sSTG}')
        else:
            q = idx - 2
            imm = slot*32768 + q*1024 - 128*stage
            if imm >= 0: e(f's_add_u32 m0, s{sM0X}, {imm}')
            else: e(f's_sub_u32 m0, s{sM0X}, {-imm}')
            off = f' offset:{128*stage}' if stage else ''
            e(f'buffer_load_dwordx4 v{(vXa,vXb)[q&1]}, s[{sX}:{sX+3}], s{sXO+q} offen{off} lds', tag=('st', stage))
    for i in range(6): dma(0, i)
    e(f'''
    v_lshlrev_b32 v{vLO}, 4, v{vL}
    v_and_b32 v{vT}, 15, v{vL}               ; n
    v_lshrrev_b32 v{vT+1}, 4, v{vL}          ; g
    v_bfe_u32 v{vT+2}, v{vL}, 1, 3           ; (n>>1)&7
    v_xor_b32 v{vT+2}, v{vT+1}, v{vT+2}
    v_lshlrev_b32 v{vT+2}, 4, v{vT+2}
    v_lshl_add_u32 v{vT+2}, v{vT}, 7, v{vT+2}
    s_lshr_b32 s10, s{sW}, 1
    s_lshl_b32 s10, s10, 13
    s_add_u32 s10, s10, {XB}
    v_add_u32 v{vXR}, s10, v{vT+2}
    v_xor_b32 v{vXR+1}, 64, v{vXR}
    v_add_u32 v{vXR+2}, 0x10000, v{vXR}
    v_add_u32 v{vXR+3}, 0x10000, v{vXR+1}
    v_bfe_u32 v{vT+2}, v{vL}, 2, 2           ; r4
    v_lshl_add_u32 v{vT+2}, v{vT+1}, 3, v{vT+2}
    v_lshlrev_b32 v{vT+2}, 7, v{vT+2}
    v_bfe_u32 v{vT+3}, v{vL}, 3, 2           ; f
    s_and_b32 s10, s{sW}, 1
    s_lshl_b32 s10, s10, 1
    v_xor_b32 v{vT+3}, s10, v{vT+3}
    v_lshl_add_u32 v{vT+2}, v{vT+3}, 5, v{vT+2}
    v_and_b32 v{vT+3}, 3, v{vL}
    v_lshl_add_u32 v{vWR}, v{vT+3}, 3, v{vT+2}
    v_xor_b32 v{vWR+1}, 32, v{vWR}
    v_lshlrev_b32 v{vB}, 12, v{vT+1}
    v_lshl_add_u32 v{vB}, v{vT}, 3, v{vB}
    v_mov_b32 v{vZ}, 0
    ''')
    for i in range(3): dma(1, i)
    e(f'''
    s_mov_b32 s{sWS}, s20
    s_mov_b32 s{sWS+1}, s21
    s_mov_b32 s{sWS+2}, {WS_USED}
    s_mov_b32 s{sWS+3}, 0x20000
    s_mov_b32 s{sWR}, s6
    s_mov_b32 s{sWR+1}, s7
    s_mov_b32 s{sWR+2}, 1052672
    s_mov_b32 s{sWR+3}, 0x20000
    s_mov_b32 s{sWI}, s8
    s_mov_b32 s{sWI+1}, s9
    s_mov_b32 s{sWI+2}, 1052672
    s_mov_b32 s{sWI+3}, 0x20000
    s_mov_b32 s{sWD}, s16
    s_mov_b32 s{sWD+1}, s17
    s_mov_b32 s{sWD+2}, 1835008
    s_mov_b32 s{sWD+3}, 0x20000
    s_mov_b32 s{sGW}, s18
    s_mov_b32 s{sGW+1}, s19
    s_mov_b32 s{sGW+2}, 1024
    s_mov_b32 s{sGW+3}, 0x20000
    s_bfe_u32 s10, s2, 0x10002            ; mhalf
    s_lshl_b32 s10, s10, 3
    s_add_u32 s10, s10, s{sW}             ; m
    s_lshr_b32 s11, s2, 6                 ; w2
    s_lshl_b32 s11, s11, 4
    s_add_u32 s10, s10, s11               ; j2
    s_bfe_u32 s11, s2, 0x30003            ; tile*4+g
    s_lshl_b32 s11, s11, 8                ; 64*(16tile+4g)
    s_add_u32 s10, s10, s11               ; j
    s_mul_i32 s10, s10, 514
    s_and_b32 s11, s2, 3
    s_lshl_b32 s22, s11, 7
    s_add_u32 s{sA}, s10, s22
    v_lshlrev_b32 v{vA}, 1, v{vL}
    s_lshr_b32 s22, s2, 2
    s_lshl_b32 s22, s22, 7
    s_lshl_b32 s23, s{sW}, 4
    s_add_u32 s22, s22, s23
    s_add_u32 s{sA2d}, s22, {OFF_WT + 256*8192}
    s_lshl_b32 s11, s11, 19               ; cq*64*8192
    s_add_u32 s11, s11, s22
    s_add_u32 s11, s11, {OFF_WT}
    v_lshlrev_b32 v{vAd}, 13, v{vL}
    v_add_u32 v{vAd}, s11, v{vAd}
    s_lshl_b32 s10, s{sW}, 5
    s_lshr_b32 s11, s2, 3
    s_add_u32 s{sBon}, s10, s11
    s_and_b32 s11, s2, 7
    s_mul_i32 s22, s11, 56
    s_add_u32 s22, s22, s{sBon}
    s_lshl_b32 s22, s22, 12
    s_add_u32 s{sBd}, s22, {OFF_WD}
    s_lshl_b32 s10, s{sBon}, 15
    s_lshl_b32 s11, s11, 7
    s_add_u32 s{sBs}, s10, s11
    s_lshl_b32 s10, s2, 3
    s_add_u32 s22, s10, s{sW}             ; p
    s_lshr_b32 s10, s22, 10
    s_lshl_b32 s10, s10, 4
    s_bfe_u32 s11, s22, 0x40002
    s_add_u32 s10, s10, s11               ; 16tile + m
    s_bfe_u32 s11, s22, 0x40006           ; 4t+g
    s_lshl_b32 s11, s11, 7
    s_add_u32 s10, s10, s11
    s_and_b32 s11, s22, 3
    s_lshl_b32 s11, s11, 5
    s_add_u32 s10, s10, s11               ; s
    s_lshl_b32 s{sCs}, s10, 10
    s_lshl_b32 s22, s22, 2
    s_add_u32 s{sCd}, s22, {OFF_G}
    s_mov_b32 s{sP0}, 0x05040100
    s_mov_b32 s{sP1}, 0x07060302
    ''')
    def read_list(T):
        st, ks = T >> 1, T & 1
        slot = st % 3; b = FR + 32*(T & 1)
        L = []
        def xr(j):
            a = vXR + ks + (2 if slot == 2 else 0)
            o = (slot*32768 if slot < 2 else 0) + j*2048
            L.append(f'ds_read_b128 {vr(b+4*j,4)}, v{a} offset:{o}')
        def wr_(arr, tt):
            o = slot*16384 + arr*8192 + ks*4096
            r = b + 16 + 8*arr + 4*tt
            L.append(f'ds_read_b64_tr_b16 {vr(r,2)}, v{vWR+tt} offset:{o}')
            L.append(f'ds_read_b64_tr_b16 {vr(r+2,2)}, v{vWR+tt} offset:{o+512}')
        wr_(0,0); xr(0); xr(1); wr_(0,1); xr(2); xr(3); wr_(1,0); wr_(1,1)
        return L
    def mfma(T, arr, tt, j):
        b = FR + 32*(T & 1); a = ACC + 32*arr + 16*tt + 4*j
        c = '0' if T == 0 else vr(a, 4)
        e(f'{M16} {vr(a,4)}, {vr(b+16+8*arr+4*tt,4)}, {vr(b+4*j,4)}, {c}')
    fill = {T: [] for T in range(16)}
    def F(T, fn): fill[T].append(fn)
    for r in range(4):
        def la(r=r):
            e(f'buffer_load_ushort v{SA+r}, v{vA}, s[{sWR}:{sWR+3}], s{sA} offen', tag='sideA')
        def lai(r=r):
            e(f'buffer_load_ushort v{SA+4+r}, v{vA}, s[{sWI}:{sWI+3}], s{sA} offen', tag='sideA')
            e(f's_add_u32 s{sA}, s{sA}, 32896')
        F(11, la); F(11, lai)
    def la2():
        e(f'''
        s_and_b32 s10, s2, 3
        s_cmp_lg_u32 s10, 3
        s_cbranch_scc1 K1_NOA2L
        s_mov_b64 exec, 1
        s_sub_u32 s10, s{sA}, {4*32896 - 128}
        ''')
        vm = list(k.vm)
        for r in range(4):
            e(f'buffer_load_ushort v{SA2+r}, v{vA}, s[{sWR}:{sWR+3}], s10 offen')
            e(f'buffer_load_ushort v{SA2+4+r}, v{vA}, s[{sWI}:{sWI+3}], s10 offen')
            if r < 3: e(f's_add_u32 s10, s10, 32896')
        k.vm = vm
        e('s_mov_b64 exec, -1')
        e('K1_NOA2L:')
    F(12, la2)
    def lb():
        e(f'''
        s_cmp_ge_u32 s{sBon}, 56
        s_cbranch_scc1 K1_NOBL
        s_add_u32 s10, s{sBs}, 16384
        ''')
        vm = list(k.vm)
        for i in range(8):
            e(f'buffer_load_dwordx2 {vr(SB+2*i,2)}, v{vB}, s[{sWD}:{sWD+3}], s{sBs if i < 4 else 10} offen offset:{(i&3)*1024}')
        k.vm = vm
        e('K1_NOBL:')
    F(12, lb)
    def lc():
        e(f'buffer_load_dwordx4 {vr(SC,4)}, v{vLO}, s[{sX}:{sX+3}], s{sCs} offen', tag='sideC')
        e(f'buffer_load_dwordx4 {vr(SC+4,4)}, v{vLO}, s[{sGW}:{sGW+3}], 0 offen', tag='sideC')
    F(10, lc)
    F(12, lambda: e(f'buffer_load_dword v{SC+19}, v{vZ}, s[{sGW}:{sGW+3}], 0 offen', tag='sideZ'))
    def fa():
        k.wait(vm='sideA')
        for r in range(4): e(f'v_lshl_or_b32 v{SA+r}, v{SA+4+r}, 16, v{SA+r}')
        e(f'buffer_store_dwordx4 {vr(SA,4)}, v{vAd}, s[{sWS}:{sWS+3}], 0 offen{st_mod}')
    def fa2(sfx):
        k.wait(vm='sideZ')
        e(f'''
        s_and_b32 s22, s2, 3
        s_cmp_lg_u32 s22, 3
        s_cbranch_scc1 K1_NOA2S{sfx}
        s_mov_b64 exec, 1
        ''')
        vm = list(k.vm)
        for r in range(4): e(f'v_lshl_or_b32 v{SA2+r}, v{SA2+4+r}, 16, v{SA2+r}')
        e(f'buffer_store_dwordx4 {vr(SA2,4)}, v{vZ}, s[{sWS}:{sWS+3}], s{sA2d} offen{st_mod}')
        k.vm = vm
        e('s_mov_b64 exec, -1')
        e(f'K1_NOA2S{sfx}:')
    def fb(sfx):
        k.wait(vm='sideZ')
        e(f'''
        s_cmp_ge_u32 s{sBon}, 56
        s_cbranch_scc1 K1_NOBS{sfx}
        ''')
        vm = list(k.vm)
        o = SB + 16
        for dt in range(4):
            for q in range(4):
                e(f'v_perm_b32 v{o+4*dt+q}, v{SB+2*(2*q+1)+(dt>>1)}, v{SB+2*(2*q)+(dt>>1)}, s{(sP0,sP1)[dt&1]}')
            e(f'buffer_store_dwordx4 {vr(o+4*dt,4)}, v{vLO}, s[{sWS}:{sWS+3}], s{sBd} offen offset:{dt*1024}{st_mod}')
        k.vm = vm
        e(f'K1_NOBS{sfx}:')
    u = SC + 8
    cl = []
    for q in range(4):
        cl.append(f'v_lshlrev_b32 v{u}, 16, v{SC+q}\nv_lshlrev_b32 v{u+1}, 16, v{SC+4+q}')
        cl.append(f'v_and_b32 v{u+2}, 0xffff0000, v{SC+q}\nv_and_b32 v{u+3}, 0xffff0000, v{SC+4+q}')
        cl.append((f'v_mul_f32 v{u+4}, v{u}, v{u+1}' if q == 0 else f'v_fmac_f32 v{u+4}, v{u}, v{u+1}') + f'\nv_fmac_f32 v{u+4}, v{u+2}, v{u+3}')
    F(13, lambda: k.wait(vm='sideC'))
    for c in cl: F(13, lambda c=c: e(c))
    cl = []
    for mod in ('quad_perm:[1,0,3,2]', 'quad_perm:[2,3,0,1]', 'row_half_mirror', 'row_mirror'):
        cl.append(f'v_add_f32_dpp v{u+4}, v{u+4}, v{u+4} {mod} row_mask:0xf bank_mask:0xf')
    cl.append(f'v_readlane_b32 s10, v{u+4}, 16\nv_readlane_b32 s11, v{u+4}, 32\nv_readlane_b32 s22, v{u+4}, 48')
    cl.append(f'v_add_f32 v{u+4}, s10, v{u+4}')
    cl.append(f'v_add_f32 v{u+4}, s11, v{u+4}')
    cl.append(f'v_add_f32 v{u+4}, s22, v{u+4}')
    cl.append(f'v_mul_f32 v{u+4}, {f2u(-math.log2(math.e)):#x}, v{u+4}')
    cl.append(f'v_exp_f32 v{u+4}, v{u+4}')
    cl.append(f'v_add_f32 v{u+4}, 1.0, v{u+4}')
    cl.append(f'v_rcp_f32 v{u+4}, v{u+4}')
    cl.append(f'''s_lshl_b32 s11, s2, 4
    s_add_u32 s11, s11, {OFF_FL}
    s_mov_b64 exec, 1
    buffer_store_dword v{u+4}, v{vZ}, s[{sWS}:{sWS+3}], s{sCd} offen{st_mod}
    buffer_store_dword v{vZ}, v{vZ}, s[{sWS}:{sWS+3}], s11 offen{st_mod}
    s_mov_b64 exec, -1''')
    for c in cl: F(14, lambda c=c: e(c))
    c0 = -2*math.sqrt(2/math.pi)*math.log2(math.e); c1 = c0*0.044715
    vC0, vC1, vONE, vYA = 16, 18, 20, 22
    for c in (f'v_mov_b32 v{vC0}, {f2u(c0):#x}\nv_mov_b32 v{vC0+1}, {f2u(c0):#x}',
              f'v_mov_b32 v{vC1}, {f2u(c1):#x}\nv_mov_b32 v{vC1+1}, {f2u(c1):#x}',
              f'v_mov_b32 v{vONE}, 1.0\nv_mov_b32 v{vONE+1}, 1.0',
              f'''; h address: (mt*56 + 2cg + wc)*4096 ; mt = 4rb + wr
              s_lshl_b32 s10, s{sRB}, 2
              s_lshr_b32 s11, s{sW}, 1
              s_add_u32 s22, s10, s11
              s_mul_i32 s10, s22, 56''',
              f'''s_lshl_b32 s11, s{sCG}, 1
              s_and_b32 s23, s{sW}, 1
              s_add_u32 s11, s11, s23
              s_add_u32 s10, s10, s11
              s_lshl_b32 s10, s10, 12''',
              f'''; Y address: Y + (32*(2(cg-28)+wc) + 16tt + 4g + r)*8192 + mt*256 + n*16
              s_sub_u32 s11, s11, 56
              s_lshl_b32 s11, s11, 18
              s_lshl_b32 s22, s22, 8
              s_add_u32 s11, s11, s22
              s_add_u32 s11, s11, {OFF_Y}''',
              f'v_lshrrev_b32 v{vYA}, 4, v{vL}\nv_lshlrev_b32 v{vYA}, 15, v{vYA}',
              f'v_and_b32 v{vYA+1}, 0xf0, v{vLO}\nv_add_u32 v{vYA}, v{vYA}, v{vYA+1}'):
        F(15, lambda c=c: e(c))
    fstep = {11: 2, 12: 4}
    k.stamp(1)
    if diag: e('s_waitcnt lgkmcnt(0)')
    k.wait(vm=('st', 0)); e('s_barrier')
    k.stamp(2)
    if diag: e('s_waitcnt lgkmcnt(0)')
    for r in read_list(0): e(r)
    pend = [(1, i) for i in range(3, 6)] + [(2, i) for i in range(6)]
    for p in pend[:3]: dma(*p)
    pend = pend[3:]
    order = [(0,0,0),(0,0,1),(0,1,0),(0,1,1),(0,0,2),(0,1,2),(0,0,3),(0,1,3)] + [(1,tt,j) for tt in range(2) for j in range(4)]
    for T in range(16):
        st, ks = T >> 1, T & 1
        if T in (7, 13): k.stamp({7:3, 13:4}[T])
        k.pt(f'a{T}')
        e('s_waitcnt lgkmcnt(0)')
        if ks == 1 and st < 7:
            k.wait(vm=('st', st+1)); k.pt(f'b{T}'); e('s_barrier'); k.pt(f'c{T}')
            if st + 3 < 8: pend += [(st+3, i) for i in range(6)]
        rd = read_list(T+1) if T < 15 else []
        fl = list(fill[T]) if ('noside' not in opt or T == 15) else []
        for i, (arr, tt, j) in enumerate(order):
            mfma(T, arr, tt, j)
            if rd: e(rd.pop(0))
            if pend and (i in (1, 6, 11) or (T == 0 and i in (3, 8, 13))): dma(*pend.pop(0))
            elif fl and (i % fstep.get(T, 1) == 0): fl.pop(0)()
        assert not rd and not fl, (T, len(rd), len(fl))
    k.stamp(5)
    e(f's_cmp_ge_u32 s{sCG}, 28')
    e('s_cbranch_scc1 K1_EP_DFT')
    vm_save = list(k.vm)
    P = lambda r: vr(r, 2)
    for j in range(4):
        G = [ACC + 16*tt + 4*j + h for tt in range(2) for h in (0, 2)]
        U = [g + 32 for g in G]
        t = FR + 16*j
        for i in range(4): e(f'v_pk_mul_f32 {P(t+2*i)}, {P(G[i])}, {P(G[i])}')
        for i in range(4): e(f'v_pk_fma_f32 {P(t+2*i)}, {P(t+2*i)}, {P(vC1)}, {P(vC0)}')
        for i in range(4): e(f'v_pk_mul_f32 {P(t+2*i)}, {P(t+2*i)}, {P(G[i])}')
        for i in range(8): e(f'v_exp_f32 v{t+i}, v{t+i}')
        for i in range(4): e(f'v_pk_mul_f32 {P(G[i])}, {P(G[i])}, {P(U[i])}')
        for i in range(4): e(f'v_pk_add_f32 {P(t+2*i)}, {P(t+2*i)}, {P(vONE)}')
        for i in range(8): e(f'v_rcp_f32 v{t+i}, v{t+i}')
        for i in range(4): e(f'v_pk_mul_f32 {P(G[i])}, {P(G[i])}, {P(t+2*i)}')
        for i in range(4): e(f'v_cvt_pk_bf16_f32 v{t+8+i}, v{G[i]}, v{G[i]+1}')
        e(f'buffer_store_dwordx4 {vr(t+8,4)}, v{vLO}, s[{sWS}:{sWS+3}], s10 offen offset:{j*1024}{st_mod}')
        if j == 1 and 'noside' not in opt: fa(); fa2('F'); fb('F')
    k.stamp(6)
    k.dump_stamps(sWS, sW, 0xF00000, 24)
    e('s_endpgm')
    k.raw('K1_EP_DFT:')
    k.vm = vm_save
    e('s_nop 6')
    for tt in range(2):
        for r in range(4):
            t = FR + 4*(tt*4 + r)
            for j in range(4):
                a = ACC + 16*tt + 4*j + r
                e(f'v_cvt_pk_bf16_f32 v{t+j}, v{a}, v{a+32}')
            e(f'buffer_store_dwordx4 {vr(t,4)}, v{vYA}, s[{sWS}:{sWS+3}], s11 offen{st_mod}')
            if (tt, r) != (1, 3): e(f's_add_u32 s11, s11, {8192 if r < 3 else 8192*13}')
    if 'noside' not in opt: fa(); fa2('D'); fb('D')
    k.stamp(6)
    k.dump_stamps(sWS, sW, 0xF00000, 24)
    e('K1_END:\ns_endpgm')
    return k.text(), kdesc(name, NV, 100)

def gen_table():
    import numpy as np
    from model import f32_to_bf16
    c = f32_to_bf16(np.cos(2*np.pi*np.arange(512)/512).astype(np.float32))
    c[128] = 0; c[384] = 0
    L = []
    for i in range(512): L.append(f'.set tc{i}, {int(c[i]):#x}')
    L.append('''.altmacro
.macro TE i
.short tc\\i
.endm
.p2align 8
.type dft_tab,@object
dft_tab:
.set td, 0
.rept 512
.set tk, 0
.rept 256
TE %(tk & 511)
.set tk, tk + td
.endr
.set td, td + 1
.endr
.set td, 0
.rept 512
TE %((td & 1) * 256)
.set tk, td + 128
.rept 255
TE %(tk & 511)
.set tk, tk + td
.endr
.set td, td + 1
.endr
.size dft_tab, 524288
.noaltmacro''')
    return '\n'.join(L) + '\n'
```

```python
from asmlib import *
from model import OFF_H, OFF_Y, OFF_Z, OFF_WT, OFF_WD, OFF_G, OFF_FL, WS_USED
import math, struct
def f2u(f): return struct.unpack('<I', struct.pack('<f', f))[0]
def fl(f):
    inl = {0.0:'0', 0.5:'0.5', 1.0:'1.0', 2.0:'2.0', 4.0:'4.0'}
    return inl.get(f, f'{f2u(f):#x}')

L_EX = 114688
L_CNT = L_EX + 16384
K2_LDS = L_CNT + 64

M16 = 'v_mfma_f32_16x16x32_bf16'
L_A = 49152
L_AR = 98304
def gen_k2(name, mode, ahead=12, diag=False):
    k = Kern(); e = k.e; k.diag = diag
    N = name.upper().replace('_KERNEL','')
    vL, vLO = 1, 2
    vT = 4
    sWS, sOUT = 24, 28
    sW, sMT, sNT, sWA = 32, 33, 34, 35
    sc1 = ' sc1' if mode == 'merged' else ''
    exb = L_EX if mode != 'fft' else 0
    k.raw(f'.globl {name}\n.p2align 8\n.type {name},@function\n{name}:')
    e(f'''
    s_cmp_ge_u32 s2, 256
    s_cbranch_scc1 {N}_END
    s_load_dwordx2 s[4:5], s[0:1], 64
    s_load_dwordx2 s[6:7], s[0:1], 80
    ''')
    for i in range(7): k.stamp(i)
    e(f'''
    v_lshrrev_b32 v{vT}, 6, v0
    v_and_b32 v{vL}, 63, v0
    s_and_b32 s10, s2, 7
    s_lshl_b32 s10, s10, 2
    s_bfe_u32 s11, s2, 0x20003
    s_add_u32 s{sMT}, s10, s11
    s_lshr_b32 s{sNT}, s2, 5
    v_readfirstlane_b32 s{sW}, v{vT}
    v_lshlrev_b32 v{vLO}, 4, v{vL}
    s_mov_b32 s{sWS+2}, {WS_USED}
    s_mov_b32 s{sWS+3}, 0x20000
    s_mov_b32 s{sOUT+2}, 2097152
    s_mov_b32 s{sOUT+3}, 0x20000
    s_and_b32 s{sWA}, s{sW}, 3
    s_waitcnt lgkmcnt(0)
    s_mov_b32 s{sWS}, s6
    s_mov_b32 s{sWS+1}, s7
    s_mov_b32 s{sOUT}, s4
    s_mov_b32 s{sOUT+1}, s5
    ''')
    ACC = 16
    vG = 80
    def load_g():
        e(f'''
        v_and_b32 v{vT}, 0xf0, v{vLO}
        s_lshl_b32 s10, s{sMT}, 8
        s_add_u32 s10, s10, {OFF_G}
        ''')
        e(f'buffer_load_dwordx4 {vr(vG,4)}, v{vT}, s[{sWS}:{sWS+3}], s10 offen', tag='g')
    def scatter(base):
        for o in range(4):
            e(f'''
            s_sub_u32 s10, s{sWA}, {o+1}
            s_and_b32 s10, s10, 3
            s_cmp_eq_u32 s10, 3
            s_cbranch_scc1 {N}_SK{base}_{o}
            s_lshl_b32 s10, s10, 12
            s_add_u32 s10, s10, {base}
            v_add_u32 v{vT+1}, s10, v{vLO}
            ''')
            for dt in range(4):
                e(f'ds_write_b128 v{vT+1}, {vr(ACC+16*o+4*dt,4)} offset:{o*12288 + dt*1024}')
            e(f's_branch {N}_SN{base}_{o}')
            e(f'{N}_SK{base}_{o}:')
            for i in range(0, 16, 2): e(f'v_pk_add_f32 {vr(OWN+i,2)}, {vr(ACC+16*o+i,2)}, 0 op_sel_hi:[1,0]')
            e(f'v_mov_b32 v{vGO}, v{vG+o}')
            e(f'{N}_SN{base}_{o}:')
    OWN = 84; vGO = 100; RD = 104
    if mode != 'fft':
        e(f's_cmp_ge_u32 s{sW}, 4')
        e(f's_cbranch_scc1 {N}_A')
        RING = 84
        sH, sD = 40, 41
        e(f'''
        s_setprio 1
        s_mul_i32 s10, s{sWA}, 14
        s_mul_i32 s{sH}, s{sMT}, 56
        s_add_u32 s{sH}, s{sH}, s10
        s_lshl_b32 s{sH}, s{sH}, 12
        s_mul_i32 s{sD}, s{sNT}, 56
        s_add_u32 s{sD}, s{sD}, s10
        s_lshl_b32 s{sD}, s{sD}, 12
        s_add_u32 s{sD}, s{sD}, {OFF_WD}
        ''')
        lorder = [('A',0),('B',0),('B',1),('A',1),('A',2),('B',2),('B',3),('A',3)]
        morder = [(0,0),(0,1),(1,0),(1,1),(2,0),(2,1),(0,2),(1,2),(2,2),(0,3),(1,3),(2,3),(3,0),(3,1),(3,2),(3,3)]
        def freg(s, kind, i): return RING + 32*(s % 3) + (16 if kind == 'B' else 0) + 4*i
        nld = [0]
        def ld():
            n = nld[0]
            if n == 112: load_g()
            if n >= 112:
                nld[0] += 1; return
            s, (kind, i) = n >> 3, lorder[n & 7]
            e(f'buffer_load_dwordx4 {vr(freg(s,kind,i),4)}, v{vLO}, s[{sWS}:{sWS+3}], s{sD if kind == "A" else sH} offen offset:{i*1024}', tag=(s, kind, i))
            if n & 7 == 6: e(f's_add_u32 s{sH}, s{sH}, 4096')
            if n & 7 == 7: e(f's_add_u32 s{sD}, s{sD}, 4096')
            nld[0] += 1
        for i in range(6): ld()
        if mode == 'merged': e('s_barrier')
        while nld[0] < ahead: ld()
        for s in range(14):
            for mi, (dt, j) in enumerate(morder):
                k.wait(vm=[(s,'A',dt), (s,'B',j)])
                if mi == 0 and s in (0, 4, 8, 11): k.stamp({0:1, 4:2, 8:3, 11:4}[s])
                a = ACC + 16*j + 4*dt
                e(f'{M16} {vr(a,4)}, {vr(freg(s,"A",dt),4)}, {vr(freg(s,"B",j),4)}, {"0" if s == 0 else vr(a,4)}')
                if mi & 1: ld()
        k.stamp(5)
        k.wait(vm='g')
        k.pad()
        scatter(0)
        e(f'''
        s_mul_i32 s10, s{sWA}, 12288
        v_add_u32 v{vT}, s10, v{vLO}
        s_lshl_b32 s10, s{sWA}, 12
        s_add_u32 s10, s10, {L_AR}
        v_add_u32 v{vT+2}, s10, v{vLO}
        v_sub_f32 v{vGO}, 1.0, v{vGO}
        v_and_b32 v{vT+3}, 15, v{vL}
        v_lshlrev_b32 v{vT+3}, 10, v{vT+3}
        v_lshrrev_b32 v{vT+4}, 4, v{vL}
        v_lshl_add_u32 v{vT+3}, v{vT+4}, 5, v{vT+3}
        s_lshr_b32 s11, s{sMT}, 4
        s_lshl_b32 s10, s11, 14
        s_and_b32 s11, s{sMT}, 15
        s_lshl_b32 s11, s11, 17
        s_add_u32 s10, s10, s11
        s_lshl_b32 s11, s{sWA}, 15
        s_add_u32 s10, s10, s11
        s_lshl_b32 s11, s{sNT}, 7
        s_add_u32 s10, s10, s11
        s_waitcnt lgkmcnt(0)
        s_barrier
        ''')
        k.stamp(6)
        if diag: e('s_waitcnt lgkmcnt(0)')
        for p in range(3):
            for dt in range(4):
                e(f'ds_read_b128 {vr(RD+16*p+4*dt,4)}, v{vT} offset:{p*4096+dt*1024}', tag=('r', p))
        for dt in range(4):
            e(f'ds_read_b128 {vr(RD+48+4*dt,4)}, v{vT+2} offset:{dt*1024}', tag=('r', 3))
        for p in range(3):
            k.wait(lg=('r', p))
            for i in range(0, 16, 2): e(f'v_pk_add_f32 {vr(OWN+i,2)}, {vr(OWN+i,2)}, {vr(RD+16*p+i,2)}')
        k.wait(lg=('r', 3))
        for i in range(0, 16, 2): e(f'v_pk_fma_f32 {vr(OWN+i,2)}, {vr(OWN+i,2)}, {vr(vGO,2)}, {vr(RD+48+i,2)} op_sel_hi:[1,0,1]')
        for r in range(4):
            e(f'v_cvt_pk_bf16_f32 v{RD+2*r}, v{OWN+r}, v{OWN+4+r}')
            e(f'v_cvt_pk_bf16_f32 v{RD+2*r+1}, v{OWN+8+r}, v{OWN+12+r}')
            if r & 1: e(f'buffer_store_dwordx4 {vr(RD+2*r-2,4)}, v{vT+3}, s[{sOUT}:{sOUT+3}], s10 offen offset:{(r>>1)*16}')
        k.dump_stamps(sWS, sW, 0xF10000, 16)
        e('s_endpgm')
        k.raw(f'{N}_A:')
        k.vm = []; k.lg = []
    if mode != 'g2':
        DY = 84
        WT = 116
        FA, FB = 124, 140
        GA, GB = 156, 172
        T1C, T1S, T2C, T2S = 188, 196, 204, 212
        A1, A2 = 16, 32
        PK = 48
        WU = 56
        TM = 72
        SAVE = 220
        sK, sSEL, sPASS, sWC = 42, 43, 44, 45
        vEX = 3
        if mode == 'merged':
            e(f'''
            v_mov_b32 v{vT}, {L_CNT}
            v_mov_b32 v{vT+2}, 0
            v_mov_b32 v{vT+3}, 0
            ds_write_b64 v{vT}, {vr(vT+2,2)}
            ds_write_b64 v{vT}, {vr(vT+2,2)} offset:8
            ''')
        e(f'''
        s_mov_b32 s{sPASS}, 0
        s_mov_b32 s{sWC}, s2
        s_mov_b32 s{sSEL}, 0x03020100
        s_cmp_eq_u32 s2, 0
        s_cselect_b32 s{sSEL}, 0x0c0c0100, s{sSEL}
        s_lshl_b32 s{sK}, s2, 13
        ''')
        def f2_loads():
            e('s_setprio 3')
            e(f's_add_u32 s10, s{sK}, {OFF_Y}')
            e(f's_add_u32 s11, s10, 4096')
            for tile in range(2):
                for t in range(4):
                    e(f'buffer_load_dwordx4 {vr(DY+16*tile+4*t,4)}, v{vLO}, s[{sWS}:{sWS+3}], s{10+tile} offen offset:{t*1024}', tag='y')
            e(f'''
            s_lshl_b32 s10, s{sWC}, 13
            s_lshl_b32 s11, s{sWA}, 11
            s_add_u32 s10, s10, s11
            s_add_u32 s10, s10, {OFF_WT}
            ''')
            for tile in range(2):
                e(f'buffer_load_dwordx4 {vr(WT+4*tile,4)}, v{vLO}, s[{sWS}:{sWS+3}], s10 offen offset:{tile*1024}', tag='w')
            e('s_setprio 0')
        f2_loads()
        if mode == 'merged':
            e('s_waitcnt lgkmcnt(0)')
            e('s_barrier')
        vM, vG4, vB, vTH0 = vT, vT+1, vT+2, vT+3
        e(f'''
        v_and_b32 v{vM}, 15, v{vL}
        v_lshrrev_b32 v{vG4}, 4, v{vL}
        v_lshlrev_b32 v{vG4}, 2, v{vG4}
        s_lshl_b32 s10, s{sWA}, 4
        v_add_u32 v{vT+4}, s10, v{vM}        ; 16w+m
        v_add_u32 v{vT+5}, s10, v{vG4}       ; 16w+4g
        v_cvt_f32_u32 v{vM}, v{vM}
        v_cvt_f32_u32 v{vG4}, v{vG4}
        v_cvt_f32_u32 v{vT+4}, v{vT+4}
        v_cvt_f32_u32 v{vT+5}, v{vT+5}
        ''')
        def angles(dst, base, th0, ks, fract=True):
            for i, kk in enumerate(ks):
                if kk == 0: e(f'v_mov_b32 v{dst+i}, v{th0}')
                else: e(f'v_fmamk_f32 v{dst+i}, v{base}, {f2u(float(kk)):#x}, v{th0}')
            if fract:
                for i in range(len(ks)): e(f'v_fract_f32 v{dst+i}, v{dst+i}')
        def consts(ra, rb, n):
            for i in range(n): e(f'v_sin_f32 v{TM+4+i}, v{TM+i}')
            for i in range(n): e(f'v_cos_f32 v{TM+i}, v{TM+i}')
            for i in range(n): e(f'v_cvt_pk_bf16_f32 v{ra+i}, v{TM+i}, v{TM+4+i}')
            for i in range(n): e(f'v_cvt_pk_bf16_f32 v{rb+i}, -v{TM+4+i}, v{TM+i}')
        e(f'v_mul_f32 v{vB}, {fl(1/64)}, v{vT+4}')
        e(f'v_mul_f32 v{vTH0}, v{vB}, v{vG4}')
        for t in range(4):
            angles(TM, vB, vTH0, [16*t+i for i in range(4)])
            consts(FA+4*t, FB+4*t, 4)
        e(f'v_mul_f32 v{vB}, {fl(1/2048)}, v{vT+4}')
        e(f'v_mul_f32 v{vTH0}, v{vB}, v{vG4}')
        angles(T1C, vB, vTH0, [0,1,2,3,16,17,18,19], fract=False)
        for i in range(8): e(f'v_sin_f32 v{T1S+i}, v{T1C+i}')
        for i in range(8): e(f'v_cos_f32 v{T1C+i}, v{T1C+i}')
        for tile in range(2):
            if tile == 0: e(f'v_mul_f32 v{vB}, {fl(1/32)}, v{vM}')
            else: e(f'v_add_f32 v{vB}, 0.5, v{vB}')
            e(f'v_mul_f32 v{vTH0}, v{vB}, v{vG4}')
            for ks in range(2):
                angles(TM, vB, vTH0, [16*ks+i for i in range(4)])
                consts(GA+8*tile+4*ks, GB+8*tile+4*ks, 4)
        for tile in range(2):
            if tile == 0: e(f'v_mul_f32 v{vB}, {fl(1/2048)}, v{vM}')
            else: e(f'v_add_f32 v{vB}, {fl(16/2048)}, v{vB}')
            e(f'v_mul_f32 v{vTH0}, v{vB}, v{vT+5}')
            angles(T2C+4*tile, vB, vTH0, [0,1,2,3], fract=False)
        for i in range(8): e(f'v_sin_f32 v{T2S+i}, v{T2C+i}')
        for i in range(8): e(f'v_cos_f32 v{T2C+i}, v{T2C+i}')
        e(f's_lshl_b32 s10, s{sWA}, 11')
        e(f's_add_u32 s10, s10, {exb}')
        e(f'v_add_u32 v{vEX}, s10, v{vLO}')
        e(f'v_add_u32 v{vT+6}, {exb}, v{vLO}') if exb else e(f'v_mov_b32 v{vT+6}, v{vLO}')
        vEXR = vT+6
        k.stamp(1)
        if diag: e('s_waitcnt lgkmcnt(0)')
        k.raw(f'{N}_PASS:')
        k.wait(vm='y')
        e(f's_cmp_lg_u32 s2, 0')
        e(f's_cbranch_scc1 {N}_NOSEL')
        for i in range(32): e(f'v_perm_b32 v{DY+i}, v{DY+i}, v{DY+i}, s{sSEL}')
        k.pad()
        k.raw(f'{N}_NOSEL:')
        P = lambda r: vr(r, 2)
        def cmul_tw(acc, C, S_, out):
            for tile in range(2):
                re, im = acc+8*tile, acc+8*tile+4
                for h in (0, 2):
                    e(f'v_pk_mul_f32 {P(TM+h)}, {P(im+h)}, {P(S_+4*tile+h)}')
                    e(f'v_pk_mul_f32 {P(TM+4+h)}, {P(re+h)}, {P(S_+4*tile+h)}')
                for h in (0, 2):
                    e(f'v_pk_fma_f32 {P(TM+h)}, {P(re+h)}, {P(C+4*tile+h)}, {P(TM+h)}')
                    e(f'v_pk_fma_f32 {P(TM+4+h)}, {P(im+h)}, {P(C+4*tile+h)}, {P(TM+4+h)} neg_lo:[0,0,1] neg_hi:[0,0,1]')
                for r in range(4): e(f'v_cvt_pk_bf16_f32 v{out+4*tile+r}, v{TM+r}, v{TM+4+r}')
        for tile in range(2):
            for t in range(4):
                for c, F in ((0, FA), (1, FB)):
                    a = A1+8*tile+4*c
                    e(f'{M16} {vr(a,4)}, {vr(DY+16*tile+4*t,4)}, {vr(F+4*t,4)}, {"0" if t == 0 else vr(a,4)}')
        k.wait(vm='w')
        for i in range(8):
            e(f'v_lshlrev_b32 v{WU+i}, 16, v{WT+i}')
            e(f'v_and_b32 v{WU+8+i}, 0xffff0000, v{WT+i}')
        cmul_tw(A1, T1C, T1S, PK)
        for tile in range(2):
            for ks in range(2):
                for c, F in ((0, GA), (1, GB)):
                    a = A2+8*tile+4*c
                    e(f'{M16} {vr(a,4)}, {vr(F+8*tile+4*ks,4)}, {vr(PK+4*ks,4)}, {"0" if ks == 0 else vr(a,4)}')
        for tile in range(2):
            re, im = A2+8*tile, A2+8*tile+4
            wr_, wi_ = WU+4*tile, WU+8+4*tile
            for h in (0, 2):
                e(f'v_pk_mul_f32 {P(TM+h)}, {P(im+h)}, {P(wi_+h)}')
                e(f'v_pk_mul_f32 {P(TM+4+h)}, {P(re+h)}, {P(wi_+h)}')
            for h in (0, 2):
                e(f'v_pk_fma_f32 {P(TM+h)}, {P(re+h)}, {P(wr_+h)}, {P(TM+h)} neg_lo:[0,0,1] neg_hi:[0,0,1]')
                e(f'v_pk_fma_f32 {P(TM+4+h)}, {P(im+h)}, {P(wr_+h)}, {P(TM+4+h)}')
            for r in range(4): e(f'v_cvt_pk_bf16_f32 v{PK+4*tile+r}, v{TM+4+r}, v{TM+r}')
        for tile in range(2):
            for ks in range(2):
                for c, F in ((0, GA), (1, GB)):
                    a = A1+8*tile+4*c
                    e(f'{M16} {vr(a,4)}, {vr(PK+4*ks,4)}, {vr(F+8*tile+4*ks,4)}, {"0" if ks == 0 else vr(a,4)}')
        cmul_tw(A1, T2C, T2S, PK)
        e(f'ds_write_b128 v{vEX}, {vr(PK,4)}')
        e(f'ds_write_b128 v{vEX}, {vr(PK+4,4)} offset:1024')
        e('s_waitcnt lgkmcnt(0)')
        if mode == 'fft':
            e('s_barrier')
        else:
            e(f'''
            v_mov_b32 v{TM}, {L_CNT}
            v_mov_b32 v{TM+1}, 1
            s_mov_b64 s[46:47], exec
            s_mov_b64 exec, 1
            ds_add_u32 v{TM}, v{TM+1}
            s_mov_b64 exec, s[46:47]
            s_lshl_b32 s10, s{sPASS}, 2
            s_add_u32 s10, s10, 4
            {N}_SPIN1:
            ds_read_b32 v{TM+1}, v{TM}
            s_waitcnt lgkmcnt(0)
            v_readfirstlane_b32 s11, v{TM+1}
            s_cmp_lt_u32 s11, s10
            s_cbranch_scc1 {N}_SPIN1
            ''')
        for t in range(4):
            for tile in range(2):
                e(f'ds_read_b128 {vr(DY+16*tile+4*t,4)}, v{vEXR} offset:{t*2048+tile*1024}', tag=('x', t, tile))
        for t in range(4):
            for tile in range(2):
                k.wait(lg=('x', t, tile))
                for c, F in ((0, FA), (1, FB)):
                    a = A2+8*tile+4*c
                    e(f'{M16} {vr(a,4)}, {vr(F+4*t,4)}, {vr(DY+16*tile+4*t,4)}, {"0" if t == 0 else vr(a,4)}')
        k.pad()
        e(f's_cmp_lg_u32 s2, 0')
        e(f's_cbranch_scc1 {N}_OUT')
        e(f's_cmp_eq_u32 s{sPASS}, 0')
        e(f's_cbranch_scc0 {N}_P1')
        for tile in range(2):
            for r in range(4): e(f'v_mov_b32 v{SAVE+4*tile+r}, v{A2+8*tile+4+r}')
        e(f'''
        s_mov_b32 s{sPASS}, 1
        s_movk_i32 s{sWC}, 256
        s_mov_b32 s{sSEL}, 0x0c0c0302
        v_add_u32 v{vEX}, 8192, v{vEX}
        v_add_u32 v{vEXR}, 8192, v{vEXR}
        ''')
        f2_loads()
        e(f's_branch {N}_PASS')
        k.raw(f'{N}_P1:')
        for tile in range(2):
            for r in range(4):
                e(f'v_mov_b32 v{A2+8*tile+r}, v{A2+8*tile+4+r}')
                e(f'v_mov_b32 v{A2+8*tile+4+r}, v{SAVE+4*tile+r}')
        k.raw(f'{N}_OUT:')
        k.stamp(2)
        k.vm = []
        e(f'''
        s_lshl_b32 s10, s{sWA}, 10
        s_add_u32 s10, s10, s{sK}
        s_add_u32 s10, s10, {OFF_Z}
        s_add_u32 s11, s10, 4096
        s_setprio 3
        ''')
        for tile in range(2):
            for r in range(4): e(f'v_cvt_pk_bf16_f32 v{PK+4*tile+r}, v{A2+8*tile+4+r}, v{A2+8*tile+r}')
            e(f'buffer_store_dwordx4 {vr(PK+4*tile,4)}, v{vLO}, s[{sWS}:{sWS+3}], s{10+tile} offen{sc1}')
        e('s_setprio 0')
        if mode == 'fft':
            e(f'{N}_END:\ns_endpgm')
            return k.text(), kdesc(name, 232, 64)
    FI = 84
    ZF = 148
    TM = 212
    vB, vTH0 = vT+2, vT+3
    e(f'''
    v_and_b32 v{vT}, 15, v{vL}
    v_lshlrev_b32 v{vT}, 2, v{vT}
    s_lshl_b32 s10, s{sNT}, 6
    v_add_u32 v{vT}, s10, v{vT}
    v_cvt_f32_u32 v{vT}, v{vT}
    v_lshrrev_b32 v{vT+1}, 4, v{vL}
    v_lshlrev_b32 v{vT+1}, 2, v{vT+1}
    s_lshl_b32 s10, s{sWA}, 6
    v_add_u32 v{vT+1}, s10, v{vT+1}
    v_cvt_f32_u32 v{vT+1}, v{vT+1}
    ''')
    def finv_dt(dt):
        if dt == 0: e(f'v_mul_f32 v{vB}, {fl(1/512)}, v{vT}')
        else: e(f'v_add_f32 v{vB}, {fl(1/512)}, v{vB}')
        e(f'v_mul_f32 v{vTH0}, v{vB}, v{vT+1}')
        for st in range(4):
            for i in range(4):
                kk = 16*st + i
                if kk == 0: e(f'v_mov_b32 v{TM+i}, v{vTH0}')
                else: e(f'v_fmamk_f32 v{TM+i}, v{vB}, {f2u(float(kk)):#x}, v{vTH0}')
            for i in range(4): e(f'v_fract_f32 v{TM+i}, v{TM+i}')
            for i in range(4): e(f'v_sin_f32 v{TM+4+i}, v{TM+i}')
            for i in range(4): e(f'v_cos_f32 v{TM+i}, v{TM+i}')
            for i in range(4): e(f'v_cvt_pk_bf16_f32 v{FI+16*st+4*dt+i}, v{TM+i}, -v{TM+4+i}')
    finv_dt(0)
    finv_dt(1)
    if mode == 'merged':
        e(f'''
        s_waitcnt vmcnt(0)
        v_mov_b32 v{TM}, {L_CNT+4}
        v_mov_b32 v{TM+1}, 1
        v_mov_b32 v{TM+3}, 0
        s_mov_b64 exec, 1
        ds_add_rtn_u32 v{TM+2}, v{TM}, v{TM+1}
        s_waitcnt lgkmcnt(0)
        v_readfirstlane_b32 s11, v{TM+2}
        s_lshl_b32 s10, s2, 4
        s_add_u32 s10, s10, {OFF_FL}
        s_cmp_lg_u32 s11, 3
        s_cbranch_scc1 {N}_NOFLAG
        s_setprio 3
        buffer_store_dword v{TM+1}, v{TM+3}, s[{sWS}:{sWS+3}], s10 offen sc1
        s_setprio 0
        {N}_NOFLAG:
        s_mov_b64 exec, -1
        ''')
        k.vm = []
    finv_dt(2)
    finv_dt(3)
    e(f'''
    s_cmp_lg_u32 s{sWA}, 0
    s_cbranch_scc1 {N}_NOK0
    s_mov_b64 exec, 0xffff
    v_mov_b32 v{FI}, 0x3f003f00
    v_mov_b32 v{FI+4}, 0xbf003f00
    v_mov_b32 v{FI+8}, 0x3f003f00
    v_mov_b32 v{FI+12}, 0xbf003f00
    s_mov_b64 exec, -1
    {N}_NOK0:
    ''')
    k.stamp(3)
    e('s_setprio 3')
    load_g()
    e(f'''
    v_lshrrev_b32 v{vT+4}, 4, v{vL}
    v_lshlrev_b32 v{vT+4}, 15, v{vT+4}
    v_add_u32 v{vT+4}, v{vT+4}, v{vT}
    s_lshl_b32 s12, s{sWA}, 19
    s_lshl_b32 s11, s{sMT}, 8
    s_add_u32 s12, s12, s11
    s_add_u32 s12, s12, {OFF_Z}
    ''')
    if mode == 'merged':
        e(f'''
        s_lshl_b32 s10, s{sWA}, 10
        s_add_u32 s10, s10, {OFF_FL}
        s_movk_i32 s13, 0x7fff
        {N}_POLL:
        buffer_load_dword v{TM}, v{vLO}, s[{sWS}:{sWS+3}], s10 offen sc1
        s_waitcnt vmcnt(0)
        v_cmp_eq_u32 vcc, 0, v{TM}
        s_cbranch_vccz {N}_GO
        s_sleep 4
        s_sub_u32 s13, s13, 1
        s_cmp_lg_u32 s13, 0
        s_cbranch_scc1 {N}_POLL
        {N}_GO:
        ''')
    k.stamp(4)
    for st in range(4):
        for i in range(4):
            e(f'buffer_load_dwordx4 {vr(ZF+16*st+4*i,4)}, v{vT+4}, s[{sWS}:{sWS+3}], s12 offen{sc1}', tag=('z', st))
            if not (st == 3 and i == 3): e(f's_add_u32 s12, s12, {8192 if i < 3 else 8192*13}')
    e('s_setprio 0')
    for st in range(4):
        k.wait(vm=('z', st))
        z = ZF + 16*st
        for i in range(4):
            for j in range(i+1, 4): e(f'v_swap_b32 v{z+4*i+j}, v{z+4*j+i}')
        for j in range(4):
            for dt in range(4):
                a = ACC + 16*j + 4*dt
                e(f'{M16} {vr(a,4)}, {vr(FI+16*st+4*dt,4)}, {vr(z+4*j,4)}, {"0" if st == 0 else vr(a,4)}')
    k.stamp(5)
    k.pad()
    scatter(L_A)
    e(f'''
    s_mul_i32 s10, s{sWA}, 12288
    s_add_u32 s10, s10, {L_A}
    v_add_u32 v{vT}, s10, v{vLO}
    s_lshl_b32 s10, s{sWA}, 12
    s_add_u32 s10, s10, {L_AR}
    v_add_u32 v{vT+2}, s10, v{vLO}
    v_mul_f32 v{vGO}, {fl(2.0**-19)}, v{vGO}
    v_mov_b32 v{TM}, {L_CNT+8}
    v_mov_b32 v{TM+1}, 1
    s_waitcnt lgkmcnt(0)
    s_mov_b64 exec, 1
    ds_add_u32 v{TM}, v{TM+1}
    s_mov_b64 exec, -1
    {N}_SPIN2:
    ds_read_b32 v{TM+1}, v{TM}
    s_waitcnt lgkmcnt(0)
    v_readfirstlane_b32 s11, v{TM+1}
    s_cmp_lt_u32 s11, 4
    s_cbranch_scc1 {N}_SPIN2
    ''')
    for p in range(3):
        for dt in range(4):
            e(f'ds_read_b128 {vr(RD+16*p+4*dt,4)}, v{vT} offset:{p*4096+dt*1024}', tag=('r', p))
    for p in range(3):
        k.wait(lg=('r', p))
        for i in range(0, 16, 2): e(f'v_pk_add_f32 {vr(OWN+i,2)}, {vr(OWN+i,2)}, {vr(RD+16*p+i,2)}')
    for dt in range(4):
        for h in (0, 2): e(f'v_pk_mul_f32 {vr(OWN+4*dt+h,2)}, {vr(OWN+4*dt+h,2)}, {vr(vGO,2)} op_sel_hi:[1,0]')
        e(f'ds_write_b128 v{vT+2}, {vr(OWN+4*dt,4)} offset:{dt*1024}')
    k.stamp(6)
    e('s_waitcnt lgkmcnt(0)')
    e('s_barrier')
    k.dump_stamps(sWS, sW, 0xF10000, 16)
    e(f'{N}_END:\ns_endpgm')
    return k.text(), kdesc(name, 232, 100)
```

```python
import numpy as np
S, D, F = 2048, 512, 1792
OFF_H  = 0
OFF_Y  = 0x700000
OFF_Z  = 0x900000
OFF_WT = 0xB00000
OFF_WD = 0xD10000
OFF_G  = 0xED0000
OFF_FL = 0xEE0000
OFF_FE = 0xEE1000
OFF_FM = 0xEE8000
OFF_EP = 0xEDF000
OFF_FP = 0xEE0000
OFF_FM2 = 0xEE8000
WS_USED = 0x1000000

def bf16_to_f32(u16): return (u16.astype(np.uint32) << 16).view(np.float32)
def f32_to_bf16(f):
    u = np.ascontiguousarray(f, dtype=np.float32).view(np.uint32)
    return ((u + 0x7FFF + ((u >> 16) & 1)) >> 16).astype(np.uint16)
def rb(f): return bf16_to_f32(f32_to_bf16(f))

def sigma(p):
    par = p >> 10; t = (p >> 8) & 3; hh = (p >> 7) & 1; s1 = (p >> 2) & 31; i = p & 3
    return s1 + 32*par + 64*i + 256*hh + 512*t
SIG = sigma(np.arange(S))

def mu(m):
    return ((m >> 2) & 1) * 16 + ((m >> 3) & 3) * 4 + (m & 3)

def tables():
    d = np.arange(D)[:, None]; k = np.arange(256)[None, :]
    C = np.cos(2*np.pi*((d*k) % 512)/512); Sn = -np.sin(2*np.pi*((d*k) % 512)/512)
    Sn[:, 0] = np.where(np.arange(D) % 2 == 0, 1.0, -1.0)
    return rb(C), rb(Sn)

def gelu(x): return 0.5*x*(1+np.tanh(np.sqrt(2/np.pi)*(x+0.044715*x**3)))

def k1_model(x, wr, wi, wg, wu, wd, gw):
    xp = x[SIG].astype(np.float64)
    h = gelu(xp @ wg) * (xp @ wu)
    hF = h.reshape(32, 16, 4, 56, 2, 4, 4).transpose(0, 3, 2, 5, 1, 4, 6)
    C, Sn = tables()
    Yr = xp @ C; Yi = xp @ Sn
    Y = np.stack([Yr.T, Yi.T], -1)
    W = np.stack([wr, wi], -1)
    Wt = W.reshape(4, 2, 4, 2, 32, 257, 2).transpose(5, 3, 0, 1, 4, 2, 6)
    WdF = wd.reshape(56, 2, 4, 4, 8, 16, 4).transpose(4, 0, 6, 2, 5, 1, 3)
    g = 1/(1+np.exp(-(xp * gw).sum(-1)))
    return dict(hF=hF, Y=Y, Wt=Wt, WdF=WdF, g=g, h=h)

def f2_model(Y, wr, wi, exact=True):
    inv = np.argsort(SIG)
    Yc = (Y[..., 0] + 1j*Y[..., 1])[:, inv]
    W = (wr + 1j*wi).T
    Z = np.zeros_like(Yc)
    Z[1:] = np.fft.ifft(np.fft.fft(Yc[1:], axis=1) * W[1:256], axis=1) * S
    z0 = (np.fft.ifft(np.fft.fft(Yc[0].real) * W[0]) * S).real
    z256 = (np.fft.ifft(np.fft.fft(Yc[0].imag) * W[256]) * S).real
    Z[0] = z0 + 1j*z256
    Z = Z[:, SIG]
    return np.stack([Z.real, Z.imag], -1)

def crb(z): return rb(z.real.astype(np.float32)) + 1j*rb(z.imag.astype(np.float32))
def f2_emul(Y, wr, wi):
    inv = np.argsort(SIG)
    Yc = (Y[..., 0] + 1j*Y[..., 1])[:, inv]
    cols = np.concatenate([Yc[0:1].real + 0j, Yc[1:], Yc[0:1].imag + 0j], 0)
    W = (wr + 1j*wi).T
    a = np.arange(64); b = np.arange(32)
    F64 = crb(np.exp(-2j*np.pi*np.outer(a, a)/64)); F32 = crb(np.exp(-2j*np.pi*np.outer(b, b)/32))
    T = np.exp(-2j*np.pi*np.outer(b, a)/2048)
    X = cols.reshape(257, 64, 32)
    U = np.einsum('kab,aj->kbj', X, F64) * T
    U = crb(U)
    V = np.einsum('cb,kbj->kcj', F32, U)
    V = crb(V * W.reshape(257, 32, 64))
    R = np.einsum('kcj,cb->kjb', V, F32.conj()) * T.conj().T
    R = crb(R)
    Zc = np.einsum('aj,kjb->kab', F64.conj(), R).reshape(257, 2048)
    Z = Zc[:256].copy(); Z[0] = Zc[0].real + 1j*Zc[256].real
    Z = crb(Z)[:, SIG]
    return np.stack([Z.real, Z.imag], -1)

def g2_model(h, Z, wd, g, rnd=False):
    d = np.arange(D)[None, :]; k = np.arange(256)[:, None]
    Fc = np.cos(2*np.pi*((d*k) % 512)/512); Fs = -np.sin(2*np.pi*((d*k) % 512)/512)
    Fc[0] = 0.5; Fs[0] = np.where(np.arange(D) % 2 == 0, 0.5, -0.5)
    if rnd: Fc = rb(Fc); Fs = rb(Fs)
    a = (Z[..., 0].T @ Fc + Z[..., 1].T @ Fs) * 2.0**-19
    b = h @ wd
    outp = g[:, None]*a + (1-g[:, None])*b
    out = np.zeros_like(outp); out[SIG] = outp
    return out

def ref_np(x, wr, wi, wg, wu, wd, gw):
    x = x.astype(np.float64)
    g = 1/(1+np.exp(-(x*gw).sum(-1, keepdims=True)))
    a = np.fft.irfft2(np.fft.rfft2(x) * (wr + 1j*wi), s=(S, D))
    b = (gelu(x@wg)*(x@wu)) @ wd
    return g*a + (1-g)*b

def make_inputs(seed=0):
    r = np.random.RandomState(seed)
    x = rb(rb(r.randn(S, D))*0.05); wr = rb(rb(rb(r.randn(S, 257))*0.05)*0.02); wi = rb(rb(rb(r.randn(S, 257))*0.05)*0.02)
    wg = rb(rb(rb(r.randn(D, F))*0.2)*D**-0.5); wu = rb(rb(rb(r.randn(D, F))*0.2)*D**-0.5); wd = rb(rb(rb(r.randn(F, D))*0.2)*F**-0.5)
    gw = rb(rb(rb(r.randn(D))*0.05)*16)
    return x, wr, wi, wg, wu, wd, gw

if __name__ == "__main__":
    inp = make_inputs()
    x, wr, wi, wg, wu, wd, gw = inp
    ref = ref_np(*inp)
    m = k1_model(*inp)
    Z = f2_model(m['Y'], wr, wi)
    out = g2_model(m['h'], Z, wd, m['g'])
    print("ref absmax", np.abs(ref).max(), "rms", ref.std(), "thr", np.abs(ref).max()/32)
    print("model (only F table rounded) err", np.abs(out-ref).max())
    Z2 = f2_emul(rb(m['Y']), wr, wi)
    print("Z emul rel err", np.abs(Z2-Z).std()/Z.std())
    out2 = rb(g2_model(rb(m['h']), Z2, wd, m['g'], rnd=True))
    print("emul err max", np.abs(out2-ref).max(), "rms", (out2-ref).std())
```

```python
from asmlib import *
from model import OFF_H, OFF_Y, OFF_Z, OFF_WT, OFF_G, OFF_FL, OFF_FM, OFF_FE, WS_USED
import math, struct
def f2u(f): return struct.unpack('<I', struct.pack('<f', f))[0]
def fl(f):
    inl = {0.0:'0', 0.5:'0.5', 1.0:'1.0', 2.0:'2.0', 4.0:'4.0'}
    return inl.get(f, f'{f2u(f):#x}')

PK_LDS = 163840
XB = 49152
L_SP = 147456
L_CNT = 163840 - 64
RROW = [32768, 114688, 131072, 0, 49152, 65536]
BROW = [0, 32768, 49152]
AROW = [16384, 81920, 98304]
M16 = 'v_mfma_f32_16x16x32_bf16'
SPIN = 0x3fff

def gen_pk(name, diag=False, pts=None, opt=(), ahead=12):
    k = Kern(); e = k.e; k.diag = diag; k.pts = pts
    P = lambda r: vr(r, 2)
    SC1 = ' sc1'
    slp = 6
    for o in opt:
        if o.startswith('slp'): slp = int(o[3:])
    vL, vLO = 1, 2
    vXa, vXb, vW = 3, 4, 5
    vXR = 6
    vWR = 10
    vA, vAd, vD, vZ = 12, 13, 14, 15
    vT = 16
    FR = 24
    ACC = 88
    SA = 152
    SA2 = 164
    SC = 168
    vAW, vAR, vHS, vAP, vAQ = 182, 183, 184, 185, 186
    sX, sB0, sB1, sWS, sWR, sWI, sWD, sGW, sDBG, sOUT = 24, 28, 32, 36, 40, 44, 48, 52, 12, 28
    sRB, sCG, sW, sSTG, sWOFF = 56, 57, 58, 59, 60
    sXO = 64
    sM0X, sM0W = 68, 69
    sA, sA2d, sCs, sCd, sMT, sNT, sWA, sDO, sDE, sM0D = 74, 75, 76, 77, 78, 79, 80, 81, 82, 83
    sP0, sP1, sR0, sCNTD = 70, 71, 72, 73
    k.raw(f'.globl {name}\n.p2align 8\n.type {name},@function\n{name}:')
    e(f'''
    s_cmp_ge_u32 s2, 256
    s_cbranch_scc1 PK_END
    s_load_dwordx4 s[4:7], s[0:1], 0
    s_load_dwordx4 s[12:15], s[0:1], 32
    s_load_dwordx2 s[8:9], s[0:1], 16
    s_load_dwordx4 s[16:19], s[0:1], 48
    s_load_dwordx4 s[20:23], s[0:1], 64
    s_load_dwordx2 s[36:37], s[0:1], 80
    s_getpc_b64 s[62:63]
    ''')
    k.raw('''    s_add_u32 s62, s62, dft_tab@rel32@lo+4
    s_addc_u32 s63, s63, dft_tab@rel32@hi+12''')
    k.stamp(0); k.pt('s0')
    e(f'''
    v_lshrrev_b32 v{vT}, 6, v0
    v_and_b32 v{vL}, 63, v0
    s_and_b32 s10, s2, 1
    s_lshl_b32 s10, s10, 2
    s_bfe_u32 s11, s2, 0x20003
    s_add_u32 s{sRB}, s10, s11
    s_bfe_u32 s10, s2, 0x20001
    s_lshl_b32 s10, s10, 3
    s_lshr_b32 s11, s2, 5
    s_add_u32 s{sCG}, s10, s11
    v_readfirstlane_b32 s{sW}, v{vT}
    v_lshrrev_b32 v{vT}, 4, v{vL}            ; i>>4
    v_lshrrev_b32 v{vT+1}, 3, v{vL}          ; i>>3
    v_and_b32 v{vT+2}, 7, v{vL}
    v_xor_b32 v{vT+2}, v{vT+2}, v{vT}        ; chunk
    v_lshlrev_b32 v{vT+2}, 4, v{vT+2}
    v_lshl_add_u32 v{vXa}, v{vT+1}, 10, v{vT+2}
    v_xor_b32 v{vXb}, 64, v{vXa}
    s_lshr_b32 s10, s{sRB}, 2
    s_lshl_b32 s10, s10, 14
    s_and_b32 s11, s{sRB}, 3
    s_lshl_b32 s11, s11, 19
    s_add_u32 s10, s10, s11
    s_lshl_b32 s11, s{sW}, 16
    s_add_u32 s{sXO}, s10, s11
    s_add_u32 s{sXO+1}, s{sXO}, 8192
    s_add_u32 s{sXO+2}, s{sXO}, 32768
    s_add_u32 s{sXO+3}, s{sXO}, 40960
    s_lshl_b32 s10, s{sW}, 12
    s_add_u32 s{sM0X}, s10, {XB}
    s_lshl_b32 s{sM0W}, s{sW}, 10
    s_movk_i32 s70, 3584
    s_mov_b32 s{sB0+2}, 1835008
    s_cmp_ge_u32 s{sCG}, 28
    s_cselect_b32 s70, 512, s70
    s_cselect_b32 s71, 28, 0
    s_cselect_b32 s{sB0+2}, 262144, s{sB0+2}
    s_mov_b32 s{sB1+2}, s{sB0+2}
    s_sub_u32 s71, s{sCG}, s71
    s_lshl_b32 s71, s71, 7
    s_lshl_b32 s{sSTG}, s70, 6
    s_add_u32 s72, s62, 262144
    s_addc_u32 s73, s63, 0
    s_lshl_b32 s10, s{sW}, 3
    v_add_u32 v{vT+4}, s10, v{vT+1}
    v_mul_lo_u32 v{vT+4}, v{vT+4}, s70
    v_bfe_u32 v{vT+2}, v{vL}, 1, 2
    v_and_b32 v{vT+3}, 1, v{vT}
    v_xor_b32 v{vT+2}, v{vT+2}, v{vT+3}
    s_and_b32 s10, s{sW}, 1
    s_lshl_b32 s10, s10, 1
    v_xor_b32 v{vT+2}, s10, v{vT+2}
    v_lshlrev_b32 v{vT+2}, 5, v{vT+2}
    v_and_b32 v{vT+3}, 1, v{vL}
    v_lshl_add_u32 v{vT+2}, v{vT+3}, 4, v{vT+2}
    v_add3_u32 v{vW}, v{vT+4}, v{vT+2}, s71
    s_mov_b32 s{sWOFF}, 0
    s_mov_b32 s{sX+2}, 2097152
    s_mov_b32 s{sX+3}, 0x20000
    s_mov_b32 s{sB0+3}, 0x20000
    s_mov_b32 s{sB1+3}, 0x20000
    s_waitcnt lgkmcnt(0)
    s_mov_b32 s{sX}, s4
    s_mov_b32 s{sX+1}, s5
    s_cmp_ge_u32 s{sCG}, 28
    s_cselect_b32 s{sB0}, s62, s12
    s_cselect_b32 s{sB0+1}, s63, s13
    s_cselect_b32 s{sB1}, s72, s14
    s_cselect_b32 s{sB1+1}, s73, s15
    ''')
    def dma(stage, idx):
        slot = stage % 3
        if idx < 2:
            e(f's_add_u32 m0, s{sM0W}, {slot*16384 + idx*8192}')
            e(f'buffer_load_dwordx4 v{vW}, s[{(sB0,sB1)[idx]}:{(sB0,sB1)[idx]+3}], s{sWOFF} offen lds', tag=('st', stage))
            if idx == 1: e(f's_add_u32 s{sWOFF}, s{sWOFF}, s{sSTG}')
        else:
            q = idx - 2
            imm = slot*32768 + q*1024 - 128*stage
            if imm >= 0: e(f's_add_u32 m0, s{sM0X}, {imm}')
            else: e(f's_sub_u32 m0, s{sM0X}, {-imm}')
            off = f' offset:{128*stage}' if stage else ''
            e(f'buffer_load_dwordx4 v{(vXa,vXb)[q&1]}, s[{sX}:{sX+3}], s{sXO+q} offen{off} lds', tag=('st', stage))
    for i in range(6): dma(0, i)
    e(f'''
    v_bfe_u32 v{vT+2}, v{vL}, 1, 2
    v_xor_b32 v{vT+2}, v{vT+2}, v{vT}
    v_lshlrev_b32 v{vT+2}, 5, v{vT+2}
    v_lshl_add_u32 v{vT+2}, v{vT+3}, 4, v{vT+2}
    v_lshl_add_u32 v{vD}, v{vT+1}, 10, v{vT+2}
    v_lshlrev_b32 v{vLO}, 4, v{vL}
    v_and_b32 v{vT}, 15, v{vL}               ; n
    v_lshrrev_b32 v{vT+1}, 4, v{vL}          ; g
    v_bfe_u32 v{vT+2}, v{vL}, 1, 3           ; (n>>1)&7
    v_xor_b32 v{vT+2}, v{vT+1}, v{vT+2}
    v_lshlrev_b32 v{vT+2}, 4, v{vT+2}
    v_lshl_add_u32 v{vT+2}, v{vT}, 7, v{vT+2}
    s_lshr_b32 s10, s{sW}, 1
    s_lshl_b32 s10, s10, 13
    s_add_u32 s10, s10, {XB}
    v_add_u32 v{vXR}, s10, v{vT+2}
    v_xor_b32 v{vXR+1}, 64, v{vXR}
    v_add_u32 v{vXR+2}, 0x10000, v{vXR}
    v_add_u32 v{vXR+3}, 0x10000, v{vXR+1}
    v_bfe_u32 v{vT+2}, v{vL}, 2, 2           ; r4
    v_lshl_add_u32 v{vT+4}, v{vT+1}, 3, v{vT+2}
    v_lshlrev_b32 v{vT+4}, 7, v{vT+4}
    v_bfe_u32 v{vT+3}, v{vL}, 3, 2           ; f
    s_and_b32 s10, s{sW}, 1
    s_lshl_b32 s10, s10, 1
    v_xor_b32 v{vT+3}, s10, v{vT+3}
    v_lshl_add_u32 v{vT+4}, v{vT+3}, 5, v{vT+4}
    v_and_b32 v{vT+3}, 3, v{vL}              ; c
    v_lshl_add_u32 v{vWR}, v{vT+3}, 3, v{vT+4}
    v_xor_b32 v{vWR+1}, 32, v{vWR}
    v_mov_b32 v{vZ}, 0
    v_mul_u32_u24 v{vA}, 32896, v{vT+1}
    v_lshl_add_u32 v{vA}, v{vT}, 3, v{vA}          ; r*32896 + c16*8
    s_lshl_b32 s10, s{sW}, 10
    s_add_u32 s10, s10, {L_SP}
    v_lshl_add_u32 v{vAW}, v{vL}, 3, s10
    v_lshlrev_b32 v{vT+2}, 4, v{vT+2}              ; r*16
    v_lshl_add_u32 v{vT+2}, v{vT+1}, 2, v{vT+2}    ; + 4G
    v_add_u32 v{vT+2}, v{vT+2}, v{vT+3}            ; + c
    v_lshl_add_u32 v{vAR}, v{vT+2}, 3, s10
    v_mul_u32_u24 v{SA2+2}, 32896, v{vL}
    v_lshlrev_b32 v{SA2+3}, 2, v{vL}
    v_mov_b32 v{vT}, {L_CNT}
    v_mov_b32 v{vT+2}, 0
    v_mov_b32 v{vT+3}, 0
    ds_write_b64 v{vT}, {vr(vT+2,2)}
    ds_write_b64 v{vT}, {vr(vT+2,2)} offset:8
    ds_write_b64 v{vT}, {vr(vT+2,2)} offset:16
    ''')
    for i in range(3): dma(1, i)
    e(f'''
    s_mov_b32 s{sWS+2}, {WS_USED}
    s_mov_b32 s{sWS+3}, 0x20000
    s_mov_b32 s{sWR}, s6
    s_mov_b32 s{sWR+1}, s7
    s_mov_b32 s{sWR+2}, 1052672
    s_mov_b32 s{sWR+3}, 0x20000
    s_mov_b32 s{sWI}, s8
    s_mov_b32 s{sWI+1}, s9
    s_mov_b32 s{sWI+2}, 1052672
    s_mov_b32 s{sWI+3}, 0x20000
    s_mov_b32 s{sWD}, s16
    s_mov_b32 s{sWD+1}, s17
    s_mov_b32 s{sWD+2}, 1835008
    s_mov_b32 s{sWD+3}, 0x20000
    s_mov_b32 s{sGW}, s18
    s_mov_b32 s{sGW+1}, s19
    s_mov_b32 s{sGW+2}, 1024
    s_mov_b32 s{sGW+3}, 0x20000
    s_mov_b32 s{sDBG}, s22
    s_mov_b32 s{sDBG+1}, s23
    s_mov_b32 s{sDBG+2}, 256
    s_mov_b32 s{sDBG+3}, 0x20000
    s_lshl_b32 s4, s2, 4
    s_add_u32 s4, s4, {OFF_FL}
    s_lshl_b32 s5, s{sRB}, 5
    s_add_u32 s5, s5, s{sCG}
    s_lshl_b32 s5, s5, 7
    s_add_u32 s5, s5, {OFF_FM}
    s_lshl_b32 s6, s2, 2
    s_add_u32 s6, s6, {OFF_FE}
    s_cmp_lg_u32 s2, 0
    s_cbranch_scc1 PK_NOZ
    v_mov_b32 v{vT+4}, 0
    v_mov_b32 v{vT+5}, 0
    v_mov_b32 v{vT+6}, 0
    v_mov_b32 v{vT+7}, 0
    s_lshl_b32 s10, s{sW}, 10
    s_add_u32 s10, s10, {OFF_FL}
    s_lshl_b32 s11, s{sW}, 12
    s_add_u32 s11, s11, {OFF_FM}
    v_and_b32 v{vT}, 31, v{vL}
    v_lshlrev_b32 v{vT}, 7, v{vT}
    ''')
    vm = list(k.vm)
    e(f'buffer_store_dwordx4 {vr(vT+4,4)}, v{vLO}, s[{sWS}:{sWS+3}], s10 offen sc1')
    e(f'buffer_store_dword v{vZ}, v{vT}, s[{sWS}:{sWS+3}], s11 offen sc1')
    k.vm = vm
    e(f'''
    s_nop 1
    PK_NOZ:
    s_bfe_u32 s10, s2, 0x10002            ; mhalf
    s_lshl_b32 s10, s10, 3
    s_add_u32 s10, s10, s{sW}             ; m
    s_lshr_b32 s11, s2, 6                 ; w2
    s_lshl_b32 s11, s11, 4
    s_add_u32 s10, s10, s11               ; j2
    s_bfe_u32 s11, s2, 0x30003            ; tile*4+g
    s_lshl_b32 s11, s11, 8
    s_add_u32 s10, s10, s11               ; j
    s_mul_i32 s10, s10, 514
    s_and_b32 s11, s2, 3
    s_lshl_b32 s3, s11, 7
    s_add_u32 s{sA}, s10, s3
    s_lshr_b32 s3, s2, 2
    s_lshl_b32 s3, s3, 7
    s_lshl_b32 s61, s{sW}, 4
    s_add_u32 s3, s3, s61
    s_add_u32 s{sA2d}, s3, {OFF_WT + 256*8192}
    s_lshl_b32 s11, s11, 19
    s_sub_u32 s3, s3, s61
    s_add_u32 s11, s11, s3
    s_lshl_b32 s3, s{sW}, 16
    s_add_u32 s11, s11, s3
    s_add_u32 s11, s11, {OFF_WT}
    v_lshrrev_b32 v{vT}, 3, v{vL}
    v_and_b32 v{vT+1}, 7, v{vL}
    v_xor_b32 v{vT+2}, v{vT}, v{vT+1}
    v_lshlrev_b32 v{vT+2}, 4, v{vT+2}
    v_lshl_add_u32 v{vAd}, v{vT}, 13, v{vT+2}
    v_add_u32 v{vAd}, s11, v{vAd}
    v_xor_b32 v{vT+1}, s{sW}, v{vT+1}
    v_lshlrev_b32 v{vT+1}, 4, v{vT+1}
    v_lshl_add_u32 v{vT+1}, v{vL}, 7, v{vT+1}
    v_add_u32 v{vAP}, {L_SP}, v{vT+1}
    s_lshl_b32 s3, s{sW}, 10
    s_add_u32 s3, s3, {L_SP}
    v_add_u32 v{vAQ}, s3, v{vLO}
    s_lshl_b32 s10, s2, 3
    s_add_u32 s3, s10, s{sW}              ; p
    s_lshr_b32 s10, s3, 10
    s_lshl_b32 s10, s10, 4
    s_bfe_u32 s11, s3, 0x40002
    s_add_u32 s10, s10, s11
    s_bfe_u32 s11, s3, 0x40006
    s_lshl_b32 s11, s11, 7
    s_add_u32 s10, s10, s11
    s_and_b32 s11, s3, 3
    s_lshl_b32 s11, s11, 5
    s_add_u32 s10, s10, s11
    s_lshl_b32 s{sCs}, s10, 10
    s_lshl_b32 s3, s3, 2
    s_add_u32 s{sCd}, s3, {OFF_G}
    s_mov_b32 s{sP0}, 0x05040100
    s_mov_b32 s{sP1}, 0x07060302
    s_and_b32 s10, s2, 7
    s_lshl_b32 s10, s10, 2
    s_bfe_u32 s11, s2, 0x20003
    s_add_u32 s{sMT}, s10, s11
    s_lshr_b32 s{sNT}, s2, 5
    s_and_b32 s{sWA}, s{sW}, 3
    s_mul_i32 s{sR0}, s{sNT}, 7
    s_lshr_b32 s{sR0}, s{sR0}, 2          ; rotation
    s_mov_b32 s{sCNTD}, 0
    s_lshr_b32 s10, s{sW}, 1
    s_mul_i32 s11, s10, 14
    s_and_b32 s3, s{sW}, 1
    s_lshl_b32 s61, s3, 14
    s_lshl_b32 s{sDE}, s{sNT}, 7
    s_add_u32 s61, s61, s{sDE}
    s_add_u32 s{sDO}, s11, s{sR0}
    s_lshl_b32 s{sDO}, s{sDO}, 15
    s_add_u32 s{sDO}, s{sDO}, s61
    s_add_u32 s{sDE}, s11, 14
    s_lshl_b32 s{sDE}, s{sDE}, 15
    s_add_u32 s{sDE}, s{sDE}, s61
    s_lshl_b32 s{sM0D}, s{sW}, 11
    ''')
    if 'norot' in opt: pass
    def read_list(T):
        st, ks = T >> 1, T & 1
        slot = st % 3; b = FR + 32*(T & 1)
        L = []
        def xr(j):
            a = vXR + ks + (2 if slot == 2 else 0)
            o = (slot*32768 if slot < 2 else 0) + j*2048
            L.append(f'ds_read_b128 {vr(b+4*j,4)}, v{a} offset:{o}')
        def wr_(arr, tt):
            o = slot*16384 + arr*8192 + ks*4096
            r = b + 16 + 8*arr + 4*tt
            L.append(f'ds_read_b64_tr_b16 {vr(r,2)}, v{vWR+tt} offset:{o}')
            L.append(f'ds_read_b64_tr_b16 {vr(r+2,2)}, v{vWR+tt} offset:{o+512}')
        wr_(0,0); xr(0); xr(1); wr_(0,1); xr(2); xr(3); wr_(1,0); wr_(1,1)
        return L
    def mfma(T, arr, tt, j):
        b = FR + 32*(T & 1); a = ACC + 32*arr + 16*tt + 4*j
        c = '0' if T == 0 else vr(a, 4)
        e(f'{M16} {vr(a,4)}, {vr(b+16+8*arr+4*tt,4)}, {vr(b+4*j,4)}, {c}')
    def wrap(so, se, step):
        e(f's_add_u32 s{so}, s{so}, {step}')
        e(f's_cmp_eq_u32 s{so}, s{se}')
        e(f's_cselect_b32 s3, {14*step}, 0')
        e(f's_sub_u32 s{so}, s{so}, s3')
    fill = {T: [] for T in range(16)}
    def F(T, fn): fill[T].append(fn)
    def opt_block(cond, label, body):
        e(cond); e(f's_cbranch_scc1 {label}')
        vm = list(k.vm); body(); k.vm = vm
        e(f'{label}:')
    def hs_set():
        def body():
            e(f's_mov_b64 exec, 1\nv_mov_b32 v{vHS}, 1')
            e(f'buffer_store_dword v{vHS}, v{vZ}, s[{sDBG}:{sDBG+3}], 0 offen sc1')
            e('s_mov_b64 exec, -1')
        opt_block(f's_or_b32 s10, s2, s{sW}', 'PK_NOHS', body)
    if 'nohs' not in opt: F(1, hs_set)
    def lc():
        e(f'buffer_load_dwordx4 {vr(SC,4)}, v{vLO}, s[{sX}:{sX+3}], s{sCs} offen', tag='sideC')
        e(f'buffer_load_dwordx4 {vr(SC+4,4)}, v{vLO}, s[{sGW}:{sGW+3}], 0 offen', tag='sideC')
    def la2():
        def body():
            e(f's_mov_b64 exec, 15')
            e(f'buffer_load_ushort v{SA2}, v{SA2+2}, s[{sWR}:{sWR+3}], s{sA} offen offset:128')
            e(f'buffer_load_ushort v{SA2+1}, v{SA2+2}, s[{sWI}:{sWI+3}], s{sA} offen offset:128')
            e('s_mov_b64 exec, -1')
        opt_block(f's_and_b32 s10, s2, 3\ns_cmp_lg_u32 s10, 3', 'PK_NOA2L', body)
    if 'noA' not in opt: F(2, la2)
    if 'noA' not in opt: F(2, lambda: e(f'buffer_load_dwordx2 {vr(SA,2)}, v{vA}, s[{sWR}:{sWR+3}], s{sA} offen', tag='sideA'))
    if 'noA' not in opt: F(2, lambda: e(f'buffer_load_dwordx2 {vr(SA+2,2)}, v{vA}, s[{sWI}:{sWI+3}], s{sA} offen', tag='sideA'))
    F(4, lc)
    def aw():
        k.wait(vm='sideA')
        e(f'ds_write_b64 v{vAW}, {vr(SA,2)}')
        e(f'ds_write_b64 v{vAW}, {vr(SA+2,2)} offset:512')
    F(5, aw)
    F(6, lambda: e(f'ds_read_b64_tr_b16 {vr(SA+4,2)}, v{vAR}\nds_read_b64_tr_b16 {vr(SA+6,2)}, v{vAR} offset:512'))
    u = SC + 8
    cl = []
    for q in range(4):
        cl.append(f'v_lshlrev_b32 v{u}, 16, v{SC+q}\nv_lshlrev_b32 v{u+1}, 16, v{SC+4+q}\nv_and_b32 v{u+2}, 0xffff0000, v{SC+q}')
        cl.append(f'v_and_b32 v{u+3}, 0xffff0000, v{SC+4+q}\n' + (f'v_mul_f32 v{u+4}, v{u}, v{u+1}' if q == 0 else f'v_fmac_f32 v{u+4}, v{u}, v{u+1}') + f'\nv_fmac_f32 v{u+4}, v{u+2}, v{u+3}')
    F(9, lambda: k.wait(vm='sideC'))
    for c in cl: F(9, lambda c=c: e(c))
    def hs_load():
        opt_block(f's_cmp_lg_u32 s{sW}, 0', 'PK_NOHL',
                  lambda: e(f'buffer_load_dword v{vHS}, v{vZ}, s[{sDBG}:{sDBG+3}], 0 offen sc1'))
    F(9, hs_load)
    def fa():
        for h in range(2):
            e(f'v_perm_b32 v{SA+8+2*h}, v{SA+6+h}, v{SA+4+h}, s{sP0}')
            e(f'v_perm_b32 v{SA+9+2*h}, v{SA+6+h}, v{SA+4+h}, s{sP1}')
        e(f'ds_write_b128 v{vAP}, {vr(SA+8,4)}')
    def fa2():
        def body():
            e(f's_mov_b64 exec, 15')
            e(f'v_lshl_or_b32 v{SA2}, v{SA2+1}, 16, v{SA2}')
            e(f'buffer_store_dword v{SA2}, v{SA2+3}, s[{sWS}:{sWS+3}], s{sA2d} offen sc1')
            e('s_mov_b64 exec, -1')
        opt_block(f's_and_b32 s10, s2, 3\ns_cmp_lg_u32 s10, 3', 'PK_NOA2S', body)
    F(7, fa2); F(7, fa)
    F(9, lambda: e(f'ds_read_b128 {vr(SA,4)}, v{vAQ}'))
    F(10, lambda: e(f'buffer_store_dwordx4 {vr(SA,4)}, v{vAd}, s[{sWS}:{sWS+3}], 0 offen sc1', tag='sideS'))
    cl = []
    for mod in ('quad_perm:[1,0,3,2]', 'quad_perm:[2,3,0,1]', 'row_half_mirror', 'row_mirror'):
        cl.append(f'v_add_f32_dpp v{u+4}, v{u+4}, v{u+4} {mod} row_mask:0xf bank_mask:0xf')
    cl.append(f'v_readlane_b32 s10, v{u+4}, 16\nv_readlane_b32 s11, v{u+4}, 32\nv_readlane_b32 s61, v{u+4}, 48')
    cl.append(f'v_add_f32 v{u+4}, s10, v{u+4}')
    cl.append(f'v_add_f32 v{u+4}, s11, v{u+4}')
    cl.append(f'v_add_f32 v{u+4}, s61, v{u+4}')
    cl.append(f'v_mul_f32 v{u+4}, {f2u(-math.log2(math.e)):#x}, v{u+4}')
    cl.append(f'v_exp_f32 v{u+4}, v{u+4}')
    cl.append(f'v_add_f32 v{u+4}, 1.0, v{u+4}')
    cl.append(f'v_rcp_f32 v{u+4}, v{u+4}')
    for c in cl: F(10, lambda c=c: e(c))
    def gst():
        e('s_mov_b64 exec, 1')
        e(f'buffer_store_dword v{u+4}, v{vZ}, s[{sWS}:{sWS+3}], s{sCd} offen sc1', tag='sideS')
        e('s_mov_b64 exec, -1')
    F(10, gst)
    def wd_pref(i, q):
        e(f's_add_u32 m0, s{sM0D}, {RROW[i] + q*1024}')
        if q == 0:
            e(f'buffer_load_dwordx4 v{vD}, s[{sWD}:{sWD+3}], s{sDO} offen lds', tag='wd')
            e(f's_add_u32 s61, s{sDO}, 8192')
        else:
            e(f'buffer_load_dwordx4 v{vD}, s[{sWD}:{sWD+3}], s61 offen lds', tag='wd')
            wrap(sDO, sDE, 32768)
    wdq = {11: [(0,0),(0,1),(1,0)], 12: [(1,1),(2,0),(2,1)], 13: [(3,0),(3,1),(4,0)], 14: [(4,1),(5,0),(5,1)]}
    def eflag():
        def body():
            e(f's_mov_b64 exec, 1\nv_mov_b32 v{vHS}, 1')
            e(f'buffer_store_dword v{vHS}, v{vZ}, s[{sWS}:{sWS+3}], s6 offen sc1')
            e('s_mov_b64 exec, -1')
        opt_block(f's_cmp_lg_u32 s{sW}, 0', 'PK_NOE', body)
    F(13, eflag)
    c0 = -2*math.sqrt(2/math.pi)*math.log2(math.e); c1 = c0*0.044715
    vC0, vC1, vONE, vYA = 16, 18, 20, 22
    for c in (f'v_mov_b32 v{vC0}, {f2u(c0):#x}\nv_mov_b32 v{vC0+1}, {f2u(c0):#x}',
              f'v_mov_b32 v{vC1}, {f2u(c1):#x}\nv_mov_b32 v{vC1+1}, {f2u(c1):#x}',
              f'v_mov_b32 v{vONE}, 1.0\nv_mov_b32 v{vONE+1}, 1.0',
              f'''s_lshl_b32 s10, s{sRB}, 2
              s_lshr_b32 s11, s{sW}, 1
              s_add_u32 s3, s10, s11
              s_mul_i32 s10, s3, 56''',
              f'''s_lshl_b32 s11, s{sCG}, 1
              s_and_b32 s61, s{sW}, 1
              s_add_u32 s11, s11, s61
              s_add_u32 s10, s10, s11
              s_lshl_b32 s10, s10, 12''',
              f'''s_sub_u32 s11, s11, 56
              s_lshl_b32 s11, s11, 18
              s_lshl_b32 s3, s3, 8
              s_add_u32 s11, s11, s3
              s_add_u32 s11, s11, {OFF_Y}''',
              f'v_lshrrev_b32 v{vYA}, 4, v{vL}\nv_lshlrev_b32 v{vYA}, 15, v{vYA}',
              f'v_and_b32 v{vYA+1}, 0xf0, v{vLO}\nv_add_u32 v{vYA}, v{vYA}, v{vYA+1}'):
        F(15, lambda c=c: e(c))
    e('s_waitcnt lgkmcnt(0)')
    k.wait(vm=('st', 0)); e('s_barrier')
    k.stamp(1); k.pt('s1')
    if diag: e('s_waitcnt lgkmcnt(0)')
    for r in read_list(0): e(r)
    pend = [(1, i) for i in range(3, 6)] + [(2, i) for i in range(6)]
    for p in pend[:3]: dma(*p)
    pend = pend[3:]
    order = [(0,0,0),(0,0,1),(0,1,0),(0,1,1),(0,0,2),(0,1,2),(0,0,3),(0,1,3)] + [(1,tt,j) for tt in range(2) for j in range(4)]
    for T in range(16):
        st, ks = T >> 1, T & 1
        k.pt(f'a{T}')
        e('s_waitcnt lgkmcnt(0)')
        if ks == 1 and st < 7:
            k.wait(vm=[('st', st+1)] + (['sideS'] if st == 6 else []))
            if st == 6 and 'nohs' not in opt:
                e(f'''
                s_cmp_lg_u32 s{sW}, 0
                s_cbranch_scc1 PK_HSOK
                s_movk_i32 s10, {SPIN}
                PK_HSP:
                v_cmp_ne_u32 vcc, 1, v{vHS}
                s_cbranch_vccz PK_HSOK
                s_sleep 2
                ''')
                vm = list(k.vm)
                e(f'buffer_load_dword v{vHS}, v{vZ}, s[{sDBG}:{sDBG+3}], 0 offen sc1')
                e(f'''
                s_waitcnt vmcnt(0)
                s_sub_u32 s10, s10, 1
                s_cmp_lg_u32 s10, 0
                s_cbranch_scc1 PK_HSP
                PK_HSOK:
                ''')
                k.vm = vm
            e('s_barrier')
            if st + 3 < 8: pend += [(st+3, i) for i in range(6)]
        rd = read_list(T+1) if T < 15 else []
        fl_ = list(fill[T]); wq = list(wdq.get(T, []))
        for i, (arr, tt, j) in enumerate(order):
            mfma(T, arr, tt, j)
            nrd = 2 if i < 4 else 1
            did = False
            for _ in range(nrd):
                if rd: e(rd.pop(0)); did = True
            if i in (2, 8, 13) or (T == 0 and i in (5, 10, 15)):
                if pend: dma(*pend.pop(0)); continue
                if wq: wd_pref(*wq.pop(0)); continue
            if fl_ and (i >= 3 or not did): fl_.pop(0)()
        while fl_: fl_.pop(0)()
        assert not rd and not wq
    k.stamp(2); k.pt('s2')
    vCN, vC1_ = 152, 153
    def count_m(sfx):
        e(f'''
        s_waitcnt vmcnt(0)
        v_mov_b32 v{vCN}, {L_CNT+12}
        v_mov_b32 v{vC1_}, 1
        s_mov_b64 exec, 1
        ds_add_rtn_u32 v{vCN}, v{vCN}, v{vC1_}
        s_waitcnt lgkmcnt(0)
        v_readfirstlane_b32 s11, v{vCN}
        s_cmp_lg_u32 s11, 7
        s_cbranch_scc1 PK_NOM{sfx}
        buffer_store_dword v{vC1_}, v{vZ}, s[{sWS}:{sWS+3}], s5 offen sc1
        PK_NOM{sfx}:
        s_mov_b64 exec, -1
        ''')
        k.vm = []
    e(f's_cmp_ge_u32 s{sCG}, 28')
    e('s_cbranch_scc1 PK_EP_DFT')
    for j in range(4):
        G = [ACC + 16*tt + 4*j + h for tt in range(2) for h in (0, 2)]
        U = [g + 32 for g in G]
        t = FR + 16*j
        for i in range(4): e(f'v_pk_mul_f32 {P(t+2*i)}, {P(G[i])}, {P(G[i])}')
        for i in range(4): e(f'v_pk_fma_f32 {P(t+2*i)}, {P(t+2*i)}, {P(vC1)}, {P(vC0)}')
        for i in range(4): e(f'v_pk_mul_f32 {P(t+2*i)}, {P(t+2*i)}, {P(G[i])}')
        for i in range(8): e(f'v_exp_f32 v{t+i}, v{t+i}')
        for i in range(4): e(f'v_pk_mul_f32 {P(G[i])}, {P(G[i])}, {P(U[i])}')
        for i in range(4): e(f'v_pk_add_f32 {P(t+2*i)}, {P(t+2*i)}, {P(vONE)}')
        for i in range(8): e(f'v_rcp_f32 v{t+i}, v{t+i}')
        for i in range(4): e(f'v_pk_mul_f32 {P(G[i])}, {P(G[i])}, {P(t+2*i)}')
        for i in range(4): e(f'v_cvt_pk_bf16_f32 v{t+8+i}, v{G[i]}, v{G[i]+1}')
        e(f'buffer_store_dwordx4 {vr(t+8,4)}, v{vLO}, s[{sWS}:{sWS+3}], s10 offen offset:{j*1024} sc1')
    e('s_nop 1')
    e('s_branch PK_P2')
    k.raw('PK_EP_DFT:')
    e('s_nop 6')
    for tt in range(2):
        for r in range(4):
            t = FR + 4*(tt*4 + r)
            for j in range(4):
                a = ACC + 16*tt + 4*j + r
                e(f'v_cvt_pk_bf16_f32 v{t+j}, v{a}, v{a+32}')
            e(f'buffer_store_dwordx4 {vr(t,4)}, v{vYA}, s[{sWS}:{sWS+3}], s11 offen sc1')
            if (tt, r) != (1, 3): e(f's_add_u32 s11, s11, {8192 if r < 3 else 8192*13}')
    count_m('D')
    e(f's_mov_b32 s{sCNTD}, 1')
    k.raw('PK_P2:')
    k.stamp(3); k.pt('s3')
    vT = 4
    ACC = 16; vG = 80
    OWN = 84; vGO = 100; RD = 104
    def lds_spin(label, off, target, t0, sleep=0):
        e(f'''
        v_mov_b32 v{t0}, {L_CNT+off}
        {label}:
        {f"s_sleep {sleep}" if sleep else ""}
        ds_read_b32 v{t0+1}, v{t0}
        s_waitcnt lgkmcnt(0)
        v_readfirstlane_b32 s11, v{t0+1}
        s_cmp_lt_u32 s11, {target}
        s_cbranch_scc1 {label}
        ''')
    def lds_inc(off, t0):
        e(f'''
        v_mov_b32 v{t0}, {L_CNT+off}
        v_mov_b32 v{t0+1}, 1
        s_mov_b64 exec, 1
        ds_add_u32 v{t0}, v{t0+1}
        s_mov_b64 exec, -1
        ''')
    def scatter(rows, tag):
        e(f's_lshl_b32 s3, s{sWA}, 12')
        for o in range(4):
            e(f'''
            s_sub_u32 s10, {o+3}, s{sWA}
            s_and_b32 s10, s10, 3
            s_cmp_eq_u32 s10, 3
            s_cbranch_scc1 PK_SK{tag}{o}
            s_mov_b32 s11, {rows[2]}
            s_cmp_eq_u32 s10, 1
            s_cselect_b32 s11, {rows[1]}, s11
            s_cmp_eq_u32 s10, 0
            s_cselect_b32 s11, {rows[0]}, s11
            s_add_u32 s11, s11, s3
            v_add_u32 v{vT+1}, s11, v{vLO}
            ''')
            for dt in range(4):
                e(f'ds_write_b128 v{vT+1}, {vr(ACC+16*o+4*dt,4)} offset:{dt*1024}')
            e(f's_branch PK_SN{tag}{o}')
            e(f'PK_SK{tag}{o}:')
            for i in range(0, 16, 2): e(f'v_pk_add_f32 {vr(OWN+i,2)}, {vr(ACC+16*o+i,2)}, 0 op_sel_hi:[1,0]')
            if tag == 'A': e(f'v_mov_b32 v{vGO}, v{vG+o}')
            e(f'PK_SN{tag}{o}:')
    def gather_addr(rows, r0):
        for p in range(3):
            e(f'''
            s_add_u32 s10, s{sWA}, {3-p}
            s_and_b32 s10, s10, 3
            s_lshl_b32 s10, s10, 12
            s_add_u32 s10, s10, {rows[p]}
            v_add_u32 v{r0+p}, s10, v{vLO}
            ''')
    e(f's_cmp_lt_u32 s{sW}, 4')
    e(f's_cbranch_scc1 PK_A')
    WA = 84
    HB = 180
    vTR = 244
    sH, sHE = 64, 65
    e(f's_cmp_lg_u32 s{sCNTD}, 0')
    e(f's_cbranch_scc1 PK_BCD')
    count_m('B')
    e('PK_BCD:')
    k.pt('b1')
    e(f'''
    s_setprio 1
    v_lshrrev_b32 v{vT}, 2, v{vL}             ; 4g + r4
    v_lshlrev_b32 v{vT}, 7, v{vT}
    v_bfe_u32 v{vT+1}, v{vL}, 3, 2
    v_lshl_add_u32 v{vT}, v{vT+1}, 5, v{vT}
    v_and_b32 v{vT+1}, 3, v{vL}
    v_lshl_add_u32 v{vT}, v{vT+1}, 3, v{vT}
    s_lshl_b32 s{sM0D}, s{sWA}, 12
    v_add_u32 v{vTR}, s{sM0D}, v{vT}
    v_xor_b32 v{vTR+1}, 32, v{vTR}
    v_xor_b32 v{vTR+2}, 64, v{vTR}
    v_xor_b32 v{vTR+3}, 96, v{vTR}
    s_mul_i32 s11, s{sWA}, 14
    s_add_u32 s10, s{sR0}, 6
    s_cmp_ge_u32 s10, 14
    s_cselect_b32 s3, 14, 0
    s_sub_u32 s10, s10, s3
    s_add_u32 s10, s10, s11
    s_lshl_b32 s{sDO}, s10, 15
    s_lshl_b32 s3, s{sNT}, 7
    s_add_u32 s{sDO}, s{sDO}, s3
    s_add_u32 s{sDE}, s11, 14
    s_lshl_b32 s{sDE}, s{sDE}, 15
    s_add_u32 s{sDE}, s{sDE}, s3
    s_mul_i32 s10, s{sMT}, 56
    s_add_u32 s10, s10, s11
    s_add_u32 s{sH}, s10, s{sR0}
    s_lshl_b32 s{sH}, s{sH}, 12
    s_add_u32 s{sHE}, s10, 14
    s_lshl_b32 s{sHE}, s{sHE}, 12
    v_min_u32 v{vT+2}, 6, v{vL}
    v_lshlrev_b32 v{vT+2}, 7, v{vT+2}
    s_lshr_b32 s10, s{sMT}, 2
    s_lshl_b32 s10, s10, 5
    s_mul_i32 s11, s{sWA}, 7
    s_add_u32 s10, s10, s11
    s_lshl_b32 s10, s10, 7
    s_add_u32 s66, s10, {OFF_FM}
    ''')
    lds_spin('PK_BSP', 12, 8, vT)
    k.pt('b2')
    def tr_list(i):
        row = RROW[i % 6]; L = []
        if row >= 65536 - 4096*4:
            L.append('\n'.join(f'v_add_u32 v{vTR+4+dt}, {row}, v{vTR+dt}' for dt in range(4)))
            a0, off = vTR+4, 0
        else: a0, off = vTR, row
        for dt in range(4):
            r = WA + 16*(i % 6) + 4*dt
            L.append(f'ds_read_b64_tr_b16 {vr(r,2)}, v{a0+dt} offset:{off}\nds_read_b64_tr_b16 {vr(r+2,2)}, v{a0+dt} offset:{off+2048}')
        return L
    def wd_dma(i, q):
        e(f's_add_u32 m0, s{sM0D}, {RROW[i % 6] + q*1024}')
        if q: e(f's_add_u32 s61, s{sDO}, {8192*q}')
        e(f'buffer_load_dwordx4 v{vD}, s[{sWD}:{sWD+3}], s{61 if q else sDO} offen lds', tag=('wd', i))
        if q == 3: wrap(sDO, sDE, 32768)
    for i in range(6):
        for x in tr_list(i): e(x, tag=('tr', i))
        if i >= 1:
            k.wait(lg=('tr', i-1))
            for q in range(4): wd_dma(i+5, q)
    k.wait(lg=('tr', 5))
    for q in range(4): wd_dma(11, q)
    k.stamp(4); k.pt('b4')
    e(f'''
    s_movk_i32 s67, {SPIN}
    PK_BPOLL:
    buffer_load_dword v{vT+3}, v{vT+2}, s[{sWS}:{sWS+3}], s66 offen sc1
    s_waitcnt vmcnt(0)
    v_cmp_eq_u32 vcc, 0, v{vT+3}
    s_cbranch_vccz PK_BGO
    s_sleep {slp}
    s_sub_u32 s67, s67, 1
    s_cmp_lg_u32 s67, 0
    s_cbranch_scc1 PK_BPOLL
    PK_BGO:
    ''')
    k.stamp(5); k.pt('b5')
    nld = [0]
    def ld():
        n = nld[0]; nld[0] += 1
        if n >= 56: return
        s, j = n >> 2, n & 3
        e(f'buffer_load_dwordx4 {vr(HB+16*(s%4)+4*j,4)}, v{vLO}, s[{sWS}:{sWS+3}], s{sH} offen offset:{j*1024} sc1', tag=('h', s, j))
        if j == 3: wrap(sH, sHE, 4096)
    while nld[0] < ahead: ld()
    for s in range(14):
        extra = []
        if 1 <= s <= 8:
            i = s + 5
            if i >= 12: extra.append(lambda i=i: k.wait(vm=('wd', i)))
            extra += [(lambda x=x, i=i: e(x, tag=('tr', i))) for x in tr_list(i)]
        if s in (2, 3):
            extra.append(lambda s=s: k.wait(lg=('tr', s+4)))
            extra += [(lambda q=q, s=s: wd_dma(s+10, q)) for q in range(4)]
        if s >= 6: k.wait(lg=('tr', s))
        for j in range(4):
            k.wait(vm=('h', s, j))
            for dt in range(4):
                a = ACC + 16*j + 4*dt
                e(f'{M16} {vr(a,4)}, {vr(WA+16*(s%6)+4*dt,4)}, {vr(HB+16*(s%4)+4*j,4)}, {"0" if s == 0 else vr(a,4)}')
                if dt == 0: ld()
                elif extra: extra.pop(0)()
        assert not extra
    k.stamp(6); k.pt('b6')
    k.pad()
    scatter(BROW, 'B')
    gather_addr(BROW, vT+4)
    e(f'''
    s_add_u32 s10, s{sWA}, 3
    s_and_b32 s10, s10, 3
    s_lshl_b32 s10, s10, 12
    s_add_u32 s10, s10, {AROW[0]}
    v_add_u32 v{vT+2}, s10, v{vLO}
    s_lshl_b32 s10, s{sWA}, 8
    s_add_u32 s10, s10, {L_SP}
    v_lshl_add_u32 v{vT}, v{vL}, 2, s10
    v_and_b32 v{vT+3}, 15, v{vL}
    v_lshlrev_b32 v{vT+3}, 10, v{vT+3}
    v_lshrrev_b32 v{vT+7}, 4, v{vL}
    v_lshl_add_u32 v{vT+3}, v{vT+7}, 5, v{vT+3}
    s_lshr_b32 s11, s{sMT}, 4
    s_lshl_b32 s10, s11, 14
    s_and_b32 s11, s{sMT}, 15
    s_lshl_b32 s11, s11, 17
    s_add_u32 s10, s10, s11
    s_lshl_b32 s11, s{sWA}, 15
    s_add_u32 s10, s10, s11
    s_lshl_b32 s11, s{sNT}, 7
    s_add_u32 s10, s10, s11
    s_mov_b32 s{sOUT}, s20
    s_mov_b32 s{sOUT+1}, s21
    s_mov_b32 s{sOUT+2}, 2097152
    s_mov_b32 s{sOUT+3}, 0x20000
    s_waitcnt lgkmcnt(0)
    s_barrier
    ''')
    k.pt('b7')
    for p in range(3):
        for dt in range(4):
            e(f'ds_read_b128 {vr(RD+16*p+4*dt,4)}, v{vT+4+p} offset:{dt*1024}', tag=('r', p))
    e(f'ds_read_b32 v{vGO}, v{vT}', tag=('r', 3))
    k.wait(lg=('r', 0))
    for dt in range(4):
        e(f'ds_read_b128 {vr(RD+48+4*dt,4)}, v{vT+2} offset:{dt*1024}', tag=('r', 3))
    for p in range(3):
        k.wait(lg=('r', p))
        for i in range(0, 16, 2): e(f'v_pk_add_f32 {vr(OWN+i,2)}, {vr(OWN+i,2)}, {vr(RD+16*p+i,2)}')
    k.wait(lg=('r', 3))
    for i in range(0, 16, 2): e(f'v_pk_fma_f32 {vr(OWN+i,2)}, {vr(OWN+i,2)}, {vr(vGO,2)}, {vr(RD+48+i,2)} op_sel_hi:[1,0,1]')
    for dt in range(4):
        for h in range(2): e(f'v_cvt_pk_bf16_f32 v{RD+2*dt+h}, v{OWN+4*dt+2*h}, v{OWN+4*dt+2*h+1}')
    for h in range(2):
        e(f'v_permlane32_swap_b32 v{RD+h}, v{RD+4+h}')
        e(f'v_permlane32_swap_b32 v{RD+2+h}, v{RD+6+h}')
    for h in range(2):
        e(f'v_permlane16_swap_b32 v{RD+h}, v{RD+2+h}')
        e(f'v_permlane16_swap_b32 v{RD+4+h}, v{RD+6+h}')
    e(f'buffer_store_dwordx4 {vr(RD,4)}, v{vT+3}, s[{sOUT}:{sOUT+3}], s10 offen')
    e(f'buffer_store_dwordx4 {vr(RD+4,4)}, v{vT+3}, s[{sOUT}:{sOUT+3}], s10 offen offset:16')
    k.dump_stamps(sWS, sW, 0xF00000, 16)
    e('s_endpgm')
    k.raw('PK_A:')
    k.vm = []; k.lg = []
    DY = 84; WT = 116; FA, FB = 124, 140; GA, GB = 156, 172
    T1C, T1S, T2C, T2S = 188, 196, 204, 212
    A1, A2 = 16, 32; PKR = 48; WU = 56; TM = 72
    SAVE = 220; KEEP = 228; WT2 = 244
    sK, sPASS = 64, 65
    vEX, vEXR, vSG = 3, 10, 11
    vM, vG4, vB, vTH0 = vT, vT+1, vT+2, vT+3
    e(f'''
    v_and_b32 v{vM}, 15, v{vL}
    v_lshrrev_b32 v{vG4}, 4, v{vL}
    v_lshlrev_b32 v{vG4}, 2, v{vG4}
    s_lshl_b32 s10, s{sWA}, 4
    v_add_u32 v{vT+4}, s10, v{vM}        ; 16w+m
    v_add_u32 v{vT+5}, s10, v{vG4}       ; 16w+4g
    v_cvt_f32_u32 v{vM}, v{vM}
    v_cvt_f32_u32 v{vG4}, v{vG4}
    v_cvt_f32_u32 v{vT+4}, v{vT+4}
    v_cvt_f32_u32 v{vT+5}, v{vT+5}
    v_and_b32 v{vSG}, 1, v{vL}
    v_mul_u32_u24 v{vSG}, 0x8000, v{vSG}
    v_lshl_or_b32 v{vSG}, v{vSG}, 16, v{vSG}
    s_mov_b32 s66, 0x80008000
    s_mov_b32 s{sPASS}, 0
    s_lshl_b32 s{sK}, s2, 13
    ''')
    def angles(dst, base, th0, ks):
        for i, kk in enumerate(ks):
            if kk == 0: e(f'v_mov_b32 v{dst+i}, v{th0}')
            else: e(f'v_fmamk_f32 v{dst+i}, v{base}, {f2u(float(kk)):#x}, v{th0}')
    def consts(ra, rb, n):
        for i in range(n): e(f'v_sin_f32 v{TM+4+i}, v{TM+i}')
        for i in range(n): e(f'v_cos_f32 v{TM+i}, v{TM+i}')
        for i in range(n): e(f'v_cvt_pk_bf16_f32 v{ra+i}, v{TM+i}, v{TM+4+i}')
        for i in range(n): e(f'v_cvt_pk_bf16_f32 v{rb+i}, -v{TM+4+i}, v{TM+i}')
    e(f'v_mul_f32 v{vB}, {fl(1/64)}, v{vT+4}')
    e(f'v_mul_f32 v{vTH0}, v{vB}, v{vG4}')
    for t in range(2):
        angles(TM, vB, vTH0, [16*t+i for i in range(4)])
        consts(FA+4*t, FB+4*t, 4)
    for i in range(8):
        e(f'v_xor_b32 v{FA+8+i}, v{vSG}, v{FA+i}')
        e(f'v_xor_b32 v{FB+8+i}, v{vSG}, v{FB+i}')
    e(f'v_mul_f32 v{vB}, {fl(1/2048)}, v{vT+4}')
    e(f'v_mul_f32 v{vTH0}, v{vB}, v{vG4}')
    angles(T1C, vB, vTH0, [0,1,2,3,16,17,18,19])
    for i in range(8): e(f'v_sin_f32 v{T1S+i}, v{T1C+i}')
    for i in range(8): e(f'v_cos_f32 v{T1C+i}, v{T1C+i}')
    vCN, vC1_ = TM, TM+1
    k.pt('A1')
    e(f's_cmp_lg_u32 s{sCNTD}, 0')
    e(f's_cbranch_scc1 PK_ACD')
    count_m('A')
    e('PK_ACD:')
    k.pt('A2')
    e(f'''
    s_setprio 3
    v_and_b32 v{TM+2}, 7, v{vL}
    v_lshlrev_b32 v{TM+2}, 12, v{TM+2}
    s_lshr_b32 s10, s2, 6
    s_lshl_b32 s10, s10, 7
    s_add_u32 s10, s10, {OFF_FM + 28*128}
    s_mov_b32 s11, {OFF_FE}
    s_movk_i32 s67, {SPIN}
    s_cmp_lg_u32 s{sWA}, 0
    s_cbranch_scc1 PK_AWAIT
    v_mov_b32 v{TM+1}, 0
    PK_APOLL:
    buffer_load_dword v{TM+3}, v{TM+2}, s[{sWS}:{sWS+3}], s10 offen sc1
    v_cmp_eq_u32 vcc, 0, v{TM+1}
    s_cbranch_vccz PK_AE
    buffer_load_dwordx4 {vr(TM+4,4)}, v{vLO}, s[{sWS}:{sWS+3}], s11 offen sc1
    s_waitcnt vmcnt(0)
    v_and_b32 v{TM+4}, v{TM+4}, v{TM+5}
    v_and_b32 v{TM+6}, v{TM+6}, v{TM+7}
    v_and_b32 v{TM+1}, v{TM+4}, v{TM+6}
    PK_AE:
    s_waitcnt vmcnt(0)
    v_and_b32 v{TM+3}, v{TM+3}, v{TM+1}
    v_cmp_eq_u32 vcc, 0, v{TM+3}
    s_cbranch_vccz PK_AGO
    s_sleep {slp}
    s_sub_u32 s67, s67, 1
    s_cmp_lg_u32 s67, 0
    s_cbranch_scc1 PK_APOLL
    PK_AGO:
    ''')
    lds_inc(16, TM)
    e('s_branch PK_AGO2')
    e('PK_AWAIT:')
    lds_spin('PK_SPIN5', 16, 1, TM, sleep=1)
    e(f'''
    PK_AGO2:
    s_add_u32 s10, s{sK}, {OFF_Y}
    s_add_u32 s11, s10, 4096
    ''')
    k.stamp(4); k.pt('A4')
    for tile in range(2):
        for t in range(4):
            e(f'buffer_load_dwordx4 {vr(DY+16*tile+4*t,4)}, v{vLO}, s[{sWS}:{sWS+3}], s{10+tile} offen offset:{t*1024} sc1', tag='y')
    e(f'''
    s_lshl_b32 s11, s{sWA}, 11
    s_add_u32 s10, s{sK}, s11
    s_add_u32 s10, s10, {OFF_WT}
    s_add_u32 s11, s11, {OFF_WT + 256*8192}
    ''')
    def w2():
        for tile in range(2):
            e(f'buffer_load_dwordx4 {vr(WT2+4*tile,4)}, v{vLO}, s[{sWS}:{sWS+3}], s11 offen offset:{tile*1024} sc1')
    opt_block('s_cmp_lg_u32 s2, 0', 'PK_NOW2', w2)
    for tile in range(2):
        e(f'buffer_load_dwordx4 {vr(WT+4*tile,4)}, v{vLO}, s[{sWS}:{sWS+3}], s10 offen offset:{tile*1024} sc1', tag='w')
    e(f'''
    v_and_b32 v{TM}, 0xf0, v{vLO}
    s_lshl_b32 s10, s{sMT}, 8
    s_add_u32 s10, s10, {OFF_G}
    ''')
    e(f'buffer_load_dwordx4 {vr(vG,4)}, v{TM}, s[{sWS}:{sWS+3}], s10 offen sc1', tag='g')
    e(f'v_mul_f32 v{vB}, {fl(1/32)}, v{vM}')
    e(f'v_mul_f32 v{vTH0}, v{vB}, v{vG4}')
    angles(TM, vB, vTH0, [0,1,2,3])
    consts(GA, GB, 4)
    for Gx in (GA, GB):
        for i in range(4): e(f'v_xor_b32 v{Gx+4+i}, v{vSG}, v{Gx+i}')
        for i in range(8):
            if i & 1: e(f'v_xor_b32 v{Gx+8+i}, s66, v{Gx+i}')
            else: e(f'v_mov_b32 v{Gx+8+i}, v{Gx+i}')
    for tile in range(2):
        if tile == 0: e(f'v_mul_f32 v{vB}, {fl(1/2048)}, v{vM}')
        else: e(f'v_add_f32 v{vB}, {fl(16/2048)}, v{vB}')
        e(f'v_mul_f32 v{vTH0}, v{vB}, v{vT+5}')
        angles(T2C+4*tile, vB, vTH0, [0,1,2,3])
    for i in range(8): e(f'v_sin_f32 v{T2S+i}, v{T2C+i}')
    for i in range(8): e(f'v_cos_f32 v{T2C+i}, v{T2C+i}')
    e(f's_lshl_b32 s10, s{sWA}, 11')
    e(f's_add_u32 s10, s10, {L_SP}')
    e(f'v_add_u32 v{vEX}, s10, v{vLO}')
    e(f'v_add_u32 v{vEXR}, {L_SP}, v{vLO}')
    k.pt('A4b')
    k.wait(vm='y')
    k.pt('A4c')
    e(f's_cmp_lg_u32 s2, 0')
    e(f's_cbranch_scc1 PK_PASS')
    for i in range(16): e(f'v_perm_b32 v{KEEP+i}, v{DY+2*i+1}, v{DY+2*i}, s{sP1}')
    for i in range(32): e(f'v_and_b32 v{DY+i}, 0xffff, v{DY+i}')
    k.pad()
    k.raw('PK_PASS:')
    def cmul_tw(acc, C, S_, out):
        for tile in range(2):
            re, im = acc+8*tile, acc+8*tile+4
            for h in (0, 2):
                e(f'v_pk_mul_f32 {P(TM+h)}, {P(im+h)}, {P(S_+4*tile+h)}')
                e(f'v_pk_mul_f32 {P(TM+4+h)}, {P(re+h)}, {P(S_+4*tile+h)}')
            for h in (0, 2):
                e(f'v_pk_fma_f32 {P(TM+h)}, {P(re+h)}, {P(C+4*tile+h)}, {P(TM+h)}')
                e(f'v_pk_fma_f32 {P(TM+4+h)}, {P(im+h)}, {P(C+4*tile+h)}, {P(TM+4+h)} neg_lo:[0,0,1] neg_hi:[0,0,1]')
            for r in range(4): e(f'v_cvt_pk_bf16_f32 v{out+4*tile+r}, v{TM+r}, v{TM+4+r}')
    for tile in range(2):
        for t in range(4):
            for c, Fc in ((0, FA), (1, FB)):
                a = A1+8*tile+4*c
                e(f'{M16} {vr(a,4)}, {vr(DY+16*tile+4*t,4)}, {vr(Fc+4*t,4)}, {"0" if t == 0 else vr(a,4)}')
    cmul_tw(A1, T1C, T1S, PKR)
    for tile in range(2):
        for ks in range(2):
            for c, Fc in ((0, GA), (1, GB)):
                a = A2+8*tile+4*c
                e(f'{M16} {vr(a,4)}, {vr(Fc+8*tile+4*ks,4)}, {vr(PKR+4*ks,4)}, {"0" if ks == 0 else vr(a,4)}')
    k.wait(vm='w')
    for i in range(8):
        e(f'v_lshlrev_b32 v{WU+i}, 16, v{WT+i}')
        e(f'v_and_b32 v{WU+8+i}, 0xffff0000, v{WT+i}')
    for tile in range(2):
        re, im = A2+8*tile, A2+8*tile+4
        wr_, wi_ = WU+4*tile, WU+8+4*tile
        for h in (0, 2):
            e(f'v_pk_mul_f32 {P(TM+h)}, {P(im+h)}, {P(wi_+h)}')
            e(f'v_pk_mul_f32 {P(TM+4+h)}, {P(re+h)}, {P(wi_+h)}')
        for h in (0, 2):
            e(f'v_pk_fma_f32 {P(TM+h)}, {P(re+h)}, {P(wr_+h)}, {P(TM+h)} neg_lo:[0,0,1] neg_hi:[0,0,1]')
            e(f'v_pk_fma_f32 {P(TM+4+h)}, {P(im+h)}, {P(wr_+h)}, {P(TM+4+h)}')
        for r in range(4): e(f'v_cvt_pk_bf16_f32 v{PKR+4*tile+r}, v{TM+4+r}, v{TM+r}')
    for tile in range(2):
        for ks in range(2):
            for c, Fc in ((0, GA), (1, GB)):
                a = A1+8*tile+4*c
                e(f'{M16} {vr(a,4)}, {vr(PKR+4*ks,4)}, {vr(Fc+8*tile+4*ks,4)}, {"0" if ks == 0 else vr(a,4)}')
    cmul_tw(A1, T2C, T2S, PKR)
    e(f'ds_write_b128 v{vEX}, {vr(PKR,4)}')
    e(f'ds_write_b128 v{vEX}, {vr(PKR+4,4)} offset:1024')
    e(f's_lshl_b32 s10, s{sPASS}, 2\ns_add_u32 s10, s10, 4')
    e('s_waitcnt lgkmcnt(0)')
    lds_inc(0, TM)
    lds_spin('PK_SPIN1', 0, 's10', TM)
    for t in range(4):
        for tile in range(2):
            e(f'ds_read_b128 {vr(DY+16*tile+4*t,4)}, v{vEXR} offset:{t*2048+tile*1024}', tag=('x', t, tile))
    for t in range(4):
        for tile in range(2):
            k.wait(lg=('x', t, tile))
            for c, Fc in ((0, FA), (1, FB)):
                a = A2+8*tile+4*c
                e(f'{M16} {vr(a,4)}, {vr(Fc+4*t,4)}, {vr(DY+16*tile+4*t,4)}, {"0" if t == 0 else vr(a,4)}')
    k.pad()
    e(f's_cmp_lg_u32 s2, 0')
    e(f's_cbranch_scc1 PK_OUT')
    e(f's_cmp_eq_u32 s{sPASS}, 0')
    e(f's_cbranch_scc0 PK_P1')
    for tile in range(2):
        for r in range(4): e(f'v_mov_b32 v{SAVE+4*tile+r}, v{A2+8*tile+4+r}')
    for i in range(16):
        e(f'v_and_b32 v{DY+2*i}, 0xffff, v{KEEP+i}')
        e(f'v_lshrrev_b32 v{DY+2*i+1}, 16, v{KEEP+i}')
    for i in range(8): e(f'v_mov_b32 v{WT+i}, v{WT2+i}')
    e(f'''
    s_mov_b32 s{sPASS}, 1
    v_subrev_u32 v{vEX}, {L_SP - AROW[1]}, v{vEX}
    v_subrev_u32 v{vEXR}, {L_SP - AROW[1]}, v{vEXR}
    ''')
    lds_spin('PK_SPIN0', 12, 8, TM)
    e(f's_branch PK_PASS')
    k.raw('PK_P1:')
    for tile in range(2):
        for r in range(4):
            e(f'v_mov_b32 v{A2+8*tile+r}, v{A2+8*tile+4+r}')
            e(f'v_mov_b32 v{A2+8*tile+4+r}, v{SAVE+4*tile+r}')
    k.raw('PK_OUT:')
    k.stamp(5); k.pt('A5')
    e(f'''
    s_lshl_b32 s10, s{sWA}, 10
    s_add_u32 s10, s10, s{sK}
    s_add_u32 s10, s10, {OFF_Z}
    s_add_u32 s11, s10, 4096
    ''')
    for tile in range(2):
        for r in range(4): e(f'v_cvt_pk_bf16_f32 v{PKR+4*tile+r}, v{A2+8*tile+4+r}, v{A2+8*tile+r}')
        e(f'buffer_store_dwordx4 {vr(PKR+4*tile,4)}, v{vLO}, s[{sWS}:{sWS+3}], s{10+tile} offen sc1')
    e('s_setprio 0')
    FI = 84; ZF = 148; TM = 212
    e(f'''
    s_lshl_b32 s10, s{sNT}, 6
    v_cvt_f32_u32 v{vT+4}, s10
    v_add_f32 v{vT}, v{vM}, v{vT+4}
    s_lshl_b32 s10, s{sWA}, 6
    v_cvt_f32_u32 v{vT+4}, s10
    v_add_f32 v{vT+1}, v{vG4}, v{vT+4}
    ''')
    def finv_dt(dt):
        if dt == 0: e(f'v_mul_f32 v{vB}, {fl(1/512)}, v{vT}')
        else: e(f'v_add_f32 v{vB}, {fl(16/512)}, v{vB}')
        e(f'v_mul_f32 v{vTH0}, v{vB}, v{vT+1}')
        for st in range(4):
            angles(TM, vB, vTH0, [16*st+i for i in range(4)])
            for i in range(4): e(f'v_sin_f32 v{TM+4+i}, v{TM+i}')
            for i in range(4): e(f'v_cos_f32 v{TM+i}, v{TM+i}')
            for i in range(4): e(f'v_cvt_pk_bf16_f32 v{FI+16*st+4*dt+i}, v{TM+i}, -v{TM+4+i}')
    finv_dt(0)
    finv_dt(1)
    e(f'''
    s_waitcnt vmcnt(0)
    v_mov_b32 v{TM}, {L_CNT+4}
    v_mov_b32 v{TM+1}, 1
    s_mov_b64 exec, 1
    ds_add_rtn_u32 v{TM+2}, v{TM}, v{TM+1}
    s_waitcnt lgkmcnt(0)
    v_readfirstlane_b32 s11, v{TM+2}
    s_cmp_lg_u32 s11, 3
    s_cbranch_scc1 PK_NOFLAG
    s_setprio 3
    buffer_store_dword v{TM+1}, v{vZ}, s[{sWS}:{sWS+3}], s4 offen sc1
    s_setprio 0
    PK_NOFLAG:
    s_mov_b64 exec, -1
    ''')
    k.vm = []
    k.pt('A6')
    finv_dt(2)
    finv_dt(3)
    e(f'''
    s_cmp_lg_u32 s{sWA}, 0
    s_cbranch_scc1 PK_NOK0
    s_mov_b64 exec, 0xffff
    v_and_b32 v{TM}, 0x80000000, v{vSG}
    v_or_b32 v{FI}, 0x3f003f00, v{TM}
    v_mov_b32 v{FI+4}, v{FI}
    v_mov_b32 v{FI+8}, v{FI}
    v_mov_b32 v{FI+12}, v{FI}
    s_mov_b64 exec, -1
    PK_NOK0:
    s_setprio 3
    v_and_b32 v{vT}, 0xf0, v{vLO}
    v_lshrrev_b32 v{vT+4}, 4, v{vL}
    v_lshlrev_b32 v{vT+4}, 15, v{vT+4}
    v_add_u32 v{vT+4}, v{vT+4}, v{vT}
    s_lshl_b32 s61, s{sWA}, 19
    s_lshl_b32 s11, s{sMT}, 8
    s_add_u32 s61, s61, s11
    s_add_u32 s61, s61, {OFF_Z}
    s_lshl_b32 s10, s{sWA}, 10
    s_add_u32 s10, s10, {OFF_FL}
    s_movk_i32 s67, {SPIN}
    ''')
    k.pt('A7')
    e(f'''
    PK_ZPOLL:
    buffer_load_dword v{TM}, v{vLO}, s[{sWS}:{sWS+3}], s10 offen sc1
    s_waitcnt vmcnt(0)
    v_cmp_eq_u32 vcc, 0, v{TM}
    s_cbranch_vccz PK_ZGO
    s_sleep {slp}
    s_sub_u32 s67, s67, 1
    s_cmp_lg_u32 s67, 0
    s_cbranch_scc1 PK_ZPOLL
    PK_ZGO:
    ''')
    k.stamp(6); k.pt('A8')
    for st in range(4):
        for i in range(4):
            e(f'buffer_load_dwordx4 {vr(ZF+16*st+4*i,4)}, v{vT+4}, s[{sWS}:{sWS+3}], s61 offen sc1', tag=('z', st))
            if not (st == 3 and i == 3): e(f's_add_u32 s61, s61, {8192 if i < 3 else 8192*13}')
    lds_spin('PK_SPIN3', 12, 8, TM)
    lds_spin('PK_SPIN4', 4, 4, TM)
    gather_addr(AROW, vT+5)
    for st in range(4):
        k.wait(vm=('z', st))
        z = ZF + 16*st
        for i in range(4):
            for j in range(i+1, 4): e(f'v_swap_b32 v{z+4*i+j}, v{z+4*j+i}')
        for j in range(4):
            for dt in range(4):
                a = ACC + 16*j + 4*dt
                e(f'{M16} {vr(a,4)}, {vr(FI+16*st+4*dt,4)}, {vr(z+4*j,4)}, {"0" if st == 0 else vr(a,4)}')
    k.pt('A9')
    k.pad()
    scatter(AROW, 'A')
    e(f'''
    s_lshl_b32 s10, s{sWA}, 8
    s_add_u32 s10, s10, {L_SP}
    v_lshl_add_u32 v{vT}, v{vL}, 2, s10
    v_sub_f32 v{vT+2}, 1.0, v{vGO}
    ds_write_b32 v{vT}, v{vT+2}
    v_mul_f32 v{vGO}, {fl(2.0**-19)}, v{vGO}
    s_waitcnt lgkmcnt(0)
    ''')
    lds_inc(8, TM)
    lds_spin('PK_SPIN2', 8, 4, TM)
    for p in range(3):
        for dt in range(4):
            e(f'ds_read_b128 {vr(RD+16*p+4*dt,4)}, v{vT+5+p} offset:{dt*1024}', tag=('r', p))
    for p in range(3):
        k.wait(lg=('r', p))
        for i in range(0, 16, 2): e(f'v_pk_add_f32 {vr(OWN+i,2)}, {vr(OWN+i,2)}, {vr(RD+16*p+i,2)}')
    for dt in range(4):
        for h in (0, 2): e(f'v_pk_mul_f32 {vr(OWN+4*dt+h,2)}, {vr(OWN+4*dt+h,2)}, {vr(vGO,2)} op_sel_hi:[1,0]')
        e(f'ds_write_b128 v{vT+5}, {vr(OWN+4*dt,4)} offset:{dt*1024}')
    k.pt('A10')
    e('s_waitcnt lgkmcnt(0)')
    e('s_barrier')
    k.dump_stamps(sWS, sW, 0xF00000, 16)
    e('PK_END:\ns_endpgm')
    return k.text(), kdesc(name, 256, 100)
```

```python
from asmlib import *
from model import OFF_H, OFF_Y, OFF_Z, OFF_WT, OFF_G, OFF_FP, OFF_FM2 as OFF_FM, OFF_EP, WS_USED
import math, struct
def f2u(f): return struct.unpack('<I', struct.pack('<f', f))[0]
def fl(f):
    inl = {0.0:'0', 0.5:'0.5', 1.0:'1.0', 2.0:'2.0', 4.0:'4.0'}
    return inl.get(f, f'{f2u(f):#x}')

PK_LDS = 163840
XB = 49152
L_SP = 147456
L_CNT = 163840 - 64
RROW = [32768, 114688, 131072, 0, 49152, 65536]
BROW = [0, 32768, 49152]
AROW = [16384, 81920, 98304]
F1SLAB = [147456, 155648] + [114688 + 8192*i for i in range(4)] + [32768, 40960]
M32 = 'v_mfma_f32_32x32x16_bf16'
M16 = 'v_mfma_f32_16x16x32_bf16'
SPIN = 0x3fff

def gen_pk3(name, diag=False, pts=None, opt=(), ahead=12):
    k = Kern(); e = k.e; k.diag = diag; k.pts = pts
    P = lambda r: vr(r, 2)
    slp = 4
    for o in opt:
        if o.startswith('slp'): slp = int(o[3:])
    vL, vLO = 1, 2
    vXa, vXb, vW = 3, 4, 5
    vXR = 6
    vWR = 10
    vHS, vF1, vD, vZ = 12, 13, 14, 15
    vT = 16
    FR = 24
    ACC = 88
    AF = 152
    FACC = 168
    vFR = 200
    SA = 208
    vA, vAW, vAR, vAP, vAd, vA2, vPF = 222, 223, 224, 225, 226, 227, 228
    sX, sB0, sB1, sWS, sWR, sWI, sWD, sGW, sDBG, sOUT = 24, 28, 32, 36, 40, 44, 48, 52, 12, 28
    sN = 22
    sRB, sCG, sW, sC, sWOFF = 56, 57, 58, 59, 60
    sXO = 64
    sM0X, sM0W = 68, 69
    sP0, sP1, sR0, sMF = 70, 71, 72, 73
    sF1O, sM0F, sFP, sFM, sMT, sNT, sWA, sDO, sDE, sM0D = 74, 75, 76, 77, 78, 79, 80, 81, 82, 83
    def opt_block(cond, label, body):
        e(cond); e(f's_cbranch_scc1 {label}')
        vm = list(k.vm); body(); k.vm = vm
        e(f'{label}:')
    def wrap(so, se, step):
        e(f's_add_u32 s{so}, s{so}, {step}')
        e(f's_cmp_eq_u32 s{so}, s{se}')
        e(f's_cselect_b32 s3, {14*step}, 0')
        e(f's_sub_u32 s{so}, s{so}, s3')
    k.raw(f'.globl {name}\n.p2align 8\n.type {name},@function\n{name}:')
    e(f'''
    s_cmp_ge_u32 s2, 256
    s_cbranch_scc1 PK_END
    s_load_dwordx4 s[4:7], s[0:1], 0
    s_load_dwordx4 s[12:15], s[0:1], 32
    s_load_dwordx2 s[8:9], s[0:1], 16
    s_load_dwordx4 s[16:19], s[0:1], 48
    s_load_dwordx4 s[20:23], s[0:1], 64
    s_load_dwordx2 s[36:37], s[0:1], 80
    ''')
    k.stamp(0); k.pt('s0')
    vB, vTH = vT+6, vT+7
    e(f'''
    v_lshrrev_b32 v{vT}, 6, v0
    v_and_b32 v{vL}, 63, v0
    s_and_b32 s10, s2, 1
    s_lshl_b32 s10, s10, 2
    s_bfe_u32 s11, s2, 0x20003
    s_add_u32 s{sRB}, s10, s11
    v_readfirstlane_b32 s{sW}, v{vT}
    s_bfe_u32 s10, s2, 0x20001
    s_lshr_b32 s{sC}, s2, 5
    s_mul_i32 s11, s10, 7
    s_add_u32 s11, s11, s{sC}
    s_sub_u32 s{sCG}, s11, 1
    s_lshl_b32 s11, s{sRB}, 2
    s_add_u32 s{sMF}, s11, s10
    v_lshrrev_b32 v{vT}, 4, v{vL}            ; i>>4
    v_lshrrev_b32 v{vT+1}, 3, v{vL}          ; i>>3
    v_and_b32 v{vT+2}, 7, v{vL}
    v_xor_b32 v{vT+2}, v{vT+2}, v{vT}
    v_lshlrev_b32 v{vT+2}, 4, v{vT+2}
    v_lshl_add_u32 v{vXa}, v{vT+1}, 10, v{vT+2}
    v_xor_b32 v{vXb}, 64, v{vXa}
    s_and_b32 s10, s{sW}, 1
    s_lshl_b32 s11, s10, 6
    v_xor_b32 v{vF1}, s11, v{vXa}
    s_lshl_b32 s11, s11, 1
    s_and_b32 s3, s{sMF}, 1
    s_lshl_b32 s3, s3, 4
    s_add_u32 s11, s11, s3
    s_and_b32 s3, s{sMF}, 14
    s_lshl_b32 s3, s3, 7
    s_add_u32 s11, s11, s3
    s_and_b32 s3, s{sMF}, 16
    s_lshl_b32 s3, s3, 1
    s_add_u32 s11, s11, s3
    s_lshr_b32 s3, s{sW}, 2
    s_lshl_b32 s3, s3, 3
    s_add_u32 s11, s11, s3
    s_and_b32 s3, s{sW}, 2
    s_lshl_b32 s3, s3, 5
    s_add_u32 s11, s11, s3
    s_lshl_b32 s{sF1O}, s11, 10
    s_lshl_b32 s{sM0F}, s{sW}, 10
    s_mov_b32 s{sX+2}, 2097152
    s_mov_b32 s{sX+3}, 0x20000
    s_and_b32 s{sWA}, s{sW}, 3
    s_lshl_b32 s10, s{sC}, 2
    s_add_u32 s10, s10, s{sWA}
    s_lshl_b32 s10, s10, 4
    v_and_b32 v{vT+2}, 15, v{vL}
    v_add_u32 v{vT+2}, s10, v{vT+2}          ; 2k + c
    v_mov_b32 v{vT+3}, 0x200
    v_cmp_eq_u32 vcc, 1, v{vT+2}
    v_cndmask_b32 v{vT+2}, v{vT+2}, v{vT+3}, vcc
    v_and_b32 v{vT+3}, 1, v{vT+2}
    v_lshrrev_b32 v{vT+2}, 1, v{vT+2}
    v_cvt_f32_u32 v{vT+2}, v{vT+2}
    v_cvt_f32_u32 v{vT+3}, v{vT+3}
    v_cvt_f32_u32 v{vT+4}, v{vT}
    v_mul_f32 v{vB}, {fl(1/512)}, v{vT+2}
    v_mul_f32 v{vT+4}, {fl(8.0)}, v{vT+4}
    v_mul_f32 v{vT+3}, {fl(0.25)}, v{vT+3}
    v_fma_f32 v{vTH}, v{vB}, v{vT+4}, v{vT+3}
    ''')
    def afrag(u):
        t = FR
        for i in range(8):
            kk = 32*u + i
            if kk == 0: e(f'v_mov_b32 v{t+i}, v{vTH}')
            else: e(f'v_fmamk_f32 v{t+i}, v{vB}, {f2u(float(kk)):#x}, v{vTH}')
        for i in range(8): e(f'v_cos_f32 v{t+i}, v{t+i}')
        for i in range(4): e(f'v_cvt_pk_bf16_f32 v{AF+4*u+i}, v{t+2*i}, v{t+2*i+1}')
    e(f'''
    s_and_b32 s10, s{sC}, 1
    s_lshl_b32 s10, s10, 5
    s_add_u32 s101, s10, s{sMF}               ; rg
    s_add_u32 s10, s10, s{sW}
    s_and_b32 s11, s{sMF}, 3
    s_lshl_b32 s11, s11, 3
    s_add_u32 s10, s10, s11
    s_lshl_b32 s11, s{sRB}, 8
    s_add_u32 s10, s10, s11
    s_mul_i32 s62, s10, 514
    s_lshr_b32 s63, s{sC}, 1                  ; cq
    s_lshl_b32 s11, s63, 7
    s_add_u32 s100, s62, s11
    v_and_b32 v{vT+2}, 15, v{vL}
    v_mul_u32_u24 v{vA}, 32896, v{vT}
    v_mul_u32_u24 v{vA2}, 32896, v{vL}
    v_lshl_add_u32 v{vA}, v{vT+2}, 3, v{vA}
    ''')
    e(f'''
    s_waitcnt lgkmcnt(0)
    s_mov_b32 s{sX}, s4
    s_mov_b32 s{sX+1}, s5
    s_add_u32 s0, s36, {OFF_EP}
    s_addc_u32 s1, s37, 0
    s_load_dword s{sN}, s[0:1], 0
    ''')
    def f1dma(sl):
        e(f's_add_u32 m0, s{sM0F}, {F1SLAB[sl] - 128*sl}')
        e(f'buffer_load_dwordx4 v{vF1}, s[{sX}:{sX+3}], s{sF1O} offen offset:{128*sl} lds', tag=('f1', sl >> 2))
    for sl in range(4): f1dma(sl)
    e(f'''
    s_mov_b32 s{sWR}, s6
    s_mov_b32 s{sWR+1}, s7
    s_mov_b32 s{sWR+2}, 1052672
    s_mov_b32 s{sWR+3}, 0x20000
    s_mov_b32 s{sWI}, s8
    s_mov_b32 s{sWI+1}, s9
    s_mov_b32 s{sWI+2}, 1052672
    s_mov_b32 s{sWI+3}, 0x20000
    ''')
    def la2():
        e(f's_mov_b64 exec, 15')
        e(f'buffer_load_ushort v{SA+12}, v{vA2}, s[{sWR}:{sWR+3}], s62 offen offset:512')
        e(f'buffer_load_ushort v{SA+13}, v{vA2}, s[{sWI}:{sWI+3}], s62 offen offset:512')
        e('s_mov_b64 exec, -1')
    opt_block('s_cmp_lg_u32 s63, 0', 'PK_NOA2L', la2)
    e(f'buffer_load_dwordx2 {vr(SA,2)}, v{vA}, s[{sWR}:{sWR+3}], s100 offen', tag='ja')
    e(f'buffer_load_dwordx2 {vr(SA+2,2)}, v{vA}, s[{sWI}:{sWI+3}], s100 offen', tag='ja')
    for sl in range(4, 8): f1dma(sl)
    e(f'''
    s_mov_b32 s{sWS+2}, {WS_USED}
    s_mov_b32 s{sWS+3}, 0x20000
    v_lshlrev_b32 v{vLO}, 4, v{vL}
    v_mov_b32 v{vZ}, 0
    ''')
    e(f'''
    s_mov_b32 s{sB0}, s12
    s_mov_b32 s{sB0+1}, s13
    s_mov_b32 s{sB0+2}, 1835008
    s_mov_b32 s{sB0+3}, 0x20000
    s_mov_b32 s{sB1}, s14
    s_mov_b32 s{sB1+1}, s15
    s_mov_b32 s{sB1+2}, 1835008
    s_mov_b32 s{sB1+3}, 0x20000
    ''')
    if 'pf' in opt:
        e(f'''
        s_lshr_b32 s10, s2, 3                    ; i
        s_cmp_ge_u32 s{sW}, 4
        s_cbranch_scc1 PK_PFW
        s_lshl_b32 s10, s10, 16
        s_and_b32 s11, s2, 1
        s_lshl_b32 s11, s11, 15
        s_add_u32 s10, s10, s11
        s_lshl_b32 s11, s{sW}, 13
        s_add_u32 s10, s10, s11
        v_lshlrev_b32 v{vT+2}, 7, v{vL}
        ''')
        e(f'buffer_load_dword v{vPF}, v{vT+2}, s[{sX}:{sX+3}], s10 offen')
        e(f'''
        s_branch PK_PFD
        PK_PFW:
        s_lshl_b32 s10, s10, 4
        s_and_b32 s11, s{sW}, 2
        s_lshl_b32 s11, s11, 2
        s_add_u32 s10, s10, s11
        s_mul_i32 s10, s10, 3584
        s_bfe_u32 s11, s2, 0x20001
        s_mul_i32 s11, s11, 896
        s_add_u32 s10, s10, s11
        v_and_b32 v{vT+2}, 7, v{vL}
        v_min_u32 v{vT+2}, 6, v{vT+2}
        v_lshlrev_b32 v{vT+2}, 7, v{vT+2}
        v_mul_u32_u24 v{vT+3}, 3584, v{vT+1}
        v_add_u32 v{vT+2}, v{vT+2}, v{vT+3}
        s_bitcmp1_b32 s{sW}, 0
        s_cbranch_scc1 PK_PFU
        ''')
        k.vm.pop()
        e(f'buffer_load_dword v{vPF}, v{vT+2}, s[{sB0}:{sB0+3}], s10 offen')
        e('s_branch PK_PFD\nPK_PFU:')
        k.vm.pop()
        e(f'buffer_load_dword v{vPF}, v{vT+2}, s[{sB1}:{sB1+3}], s10 offen')
        e('PK_PFD:')
    e(f'''
    s_mov_b32 s{sWD}, s16
    s_mov_b32 s{sWD+1}, s17
    s_mov_b32 s{sWD+2}, 1835008
    s_mov_b32 s{sWD+3}, 0x20000
    v_bfe_u32 v{vT+2}, v{vL}, 1, 2
    v_xor_b32 v{vT+4}, v{vT+2}, v{vT}
    v_lshlrev_b32 v{vT+4}, 5, v{vT+4}
    v_and_b32 v{vT+3}, 1, v{vL}
    v_lshl_add_u32 v{vT+4}, v{vT+3}, 4, v{vT+4}
    v_lshl_add_u32 v{vD}, v{vT+1}, 10, v{vT+4}
    s_lshl_b32 s10, s{sC}, 5
    s_add_u32 s10, s10, s{sMF}
    s_lshl_b32 s10, s10, 7
    s_add_u32 s{sFP}, s10, {OFF_FP}
    s_and_b32 s10, s2, 7
    s_lshl_b32 s10, s10, 2
    s_bfe_u32 s11, s2, 0x20003
    s_add_u32 s{sMT}, s10, s11
    s_mov_b32 s{sNT}, s{sC}
    s_mul_i32 s{sR0}, s{sNT}, 7
    s_lshr_b32 s{sR0}, s{sR0}, 2
    s_lshr_b32 s10, s{sW}, 1
    s_mul_i32 s11, s10, 14
    s_and_b32 s3, s{sW}, 1
    s_lshl_b32 s61, s3, 14
    s_lshl_b32 s{sDE}, s{sNT}, 7
    s_add_u32 s61, s61, s{sDE}
    s_add_u32 s{sDO}, s11, s{sR0}
    s_lshl_b32 s{sDO}, s{sDO}, 15
    s_add_u32 s{sDO}, s{sDO}, s61
    s_add_u32 s{sDE}, s11, 14
    s_lshl_b32 s{sDE}, s{sDE}, 15
    s_add_u32 s{sDE}, s{sDE}, s61
    s_lshl_b32 s{sM0D}, s{sW}, 11
    s_cmp_eq_u32 s{sC}, 0
    s_cbranch_scc1 PK_FFT
    ''')
    vm_common = list(k.vm)
    def f1_addr():
        e(f'''
        v_and_b32 v{vT}, 15, v{vL}               ; n
        v_lshrrev_b32 v{vT+1}, 4, v{vL}          ; g
        v_bfe_u32 v{vT+2}, v{vL}, 1, 3
        v_xor_b32 v{vT+2}, v{vT+1}, v{vT+2}
        v_lshlrev_b32 v{vT+2}, 4, v{vT+2}
        v_lshl_add_u32 v{vT+2}, v{vT}, 7, v{vT+2}
        s_lshr_b32 s10, s{sW}, 2
        s_lshl_b32 s11, s10, 12
        v_add_u32 v{vFR}, s11, v{vT+2}
        v_xor_b32 v{vFR+1}, 64, v{vFR}
        v_add_u32 v{vFR+2}, {F1SLAB[2]}, v{vFR}
        v_add_u32 v{vFR+3}, {F1SLAB[2]}, v{vFR+1}
        v_lshrrev_b32 v{vT+3}, 3, v{vL}
        v_lshlrev_b32 v{vT+3}, 13, v{vT+3}
        v_and_b32 v{vT+4}, 7, v{vL}
        v_lshl_add_u32 v{vT+3}, v{vT+4}, 4, v{vT+3}
        s_lshl_b32 s11, s{sC}, 2
        s_add_u32 s11, s11, s{sWA}
        s_lshl_b32 s11, s11, 16
        s_lshl_b32 s10, s10, 7
        s_add_u32 s11, s11, s10
        s_lshl_b32 s10, s{sMF}, 8
        s_add_u32 s11, s11, s10
        s_add_u32 s11, s11, {OFF_Y}
        v_add_u32 v{vFR+4}, s11, v{vT+3}
        v_lshlrev_b32 v{vFR+6}, 31, v{vT+1}
        v_or_b32 v{vFR+6}, 1.0, v{vFR+6}
        s_lshl_b32 s10, s{sW}, 12
        s_add_u32 s10, s10, {XB + 32768 + 3072}
        v_lshl_add_u32 v{vAW}, v{vL}, 3, s10
        v_bfe_u32 v{vT+3}, v{vL}, 2, 2
        v_lshlrev_b32 v{vT+3}, 4, v{vT+3}
        v_lshl_add_u32 v{vT+3}, v{vT+1}, 2, v{vT+3}
        v_and_b32 v{vT+5}, 3, v{vL}
        v_add_u32 v{vT+3}, v{vT+3}, v{vT+5}
        v_lshl_add_u32 v{vAR}, v{vT+3}, 3, s10
        v_xor_b32 v{vT+3}, s{sW}, v{vT+4}
        v_lshlrev_b32 v{vT+3}, 4, v{vT+3}
        v_lshl_add_u32 v{vT+5}, v{vT+4}, 7, v{vT+3}
        s_sub_u32 s10, s10, 1024
        v_add_u32 v{vA}, s10, v{vLO}
        v_lshrrev_b32 v{vT+3}, 3, v{vL}
        v_lshl_add_u32 v{vT+5}, v{vT+3}, 12, v{vT+5}
        v_add_u32 v{vAP}, {XB + 32768 + 2048}, v{vT+5}
        v_xor_b32 v{vT+4}, v{vT+4}, v{vT+3}
        v_lshlrev_b32 v{vT+4}, 4, v{vT+4}
        v_lshl_add_u32 v{vAd}, v{vT+3}, 13, v{vT+4}
        v_lshlrev_b32 v{vA2}, 2, v{vL}
        s_lshl_b32 s4, s101, 7
        s_lshl_b32 s10, s63, 19
        s_lshl_b32 s11, s{sW}, 16
        s_add_u32 s10, s10, s11
        s_add_u32 s7, s10, s4
        s_add_u32 s7, s7, {OFF_WT}
        s_lshl_b32 s11, s{sW}, 4
        s_add_u32 s5, s4, s11
        s_add_u32 s5, s5, {OFF_WT + 256*8192}
        s_mov_b32 s{sP0}, 0x05040100
        s_mov_b32 s{sP1}, 0x07060302
        s_waitcnt lgkmcnt(0)
        s_add_u32 s{sN}, s{sN}, 1
        s_xor_b32 s{sN+1}, s{sN}, 0x9e3779b9
        ''')
    def f1_half(hf, between=()):
        between = list(between)
        def mm(uu):
            k.wait(lg=('fb', uu))
            for ee in range(2):
                a = FACC + 8*(2*hf + (uu >> 2)) + 4*ee
                e(f'{M16} {vr(a,4)}, {vr(AF+4*(uu&3),4)}, {vr(FR+8*uu+4*ee,4)}, {"0" if uu & 3 == 0 else vr(a,4)}')
            if between: between.pop(0)()
        for u in range(8):
            sl, ks = 4*hf + (u >> 1), u & 1
            for ee in range(2):
                a = vFR + ks + (2 if sl < 6 else 0)
                o = (F1SLAB[sl] - (F1SLAB[2] if sl < 6 else 0)) + ee*2048
                e(f'ds_read_b128 {vr(FR+8*u+4*ee,4)}, v{a} offset:{o}', tag=('fb', u))
            if u >= 4: mm(u - 4)
        for uu in range(4, 8): mm(uu)
        assert not between
    def f1_out():
        t = AF; sg = vFR + 6
        NEG = 'neg_lo:[0,1] neg_hi:[0,1]'
        for ee in range(2):
            q0, q1, q2, q3 = [FACC + 8*q + 4*ee for q in range(4)]
            e(f'v_pk_add_f32 {P(q0)}, {P(q0)}, {P(q2)}')
            e(f'v_pk_add_f32 {P(q1)}, {P(q1)}, {P(q3)}')
            e(f'v_pk_add_f32 {P(q0+2)}, {P(q0+2)}, {P(q2+2)} {NEG}')
            e(f'v_pk_add_f32 {P(q1+2)}, {P(q1+2)}, {P(q3+2)} {NEG}')
        for ee in range(2):
            q0, q1 = FACC + 4*ee, FACC + 8 + 4*ee
            e(f'v_pk_fma_f32 {P(q0)}, {P(q1)}, {P(sg)}, {P(q0)} op_sel_hi:[1,0,1]')
            e(f'v_pk_fma_f32 {P(q0+2)}, {P(q1+2)}, {P(sg)}, {P(q0+2)} op_sel:[1,0,0] op_sel_hi:[0,0,1] neg_hi:[1,0,0]')
        for ee in range(2):
            a = FACC + 4*ee
            e(f'v_cvt_pk_bf16_f32 v{t+ee}, v{a}, v{a+1}')
            e(f'v_cvt_pk_bf16_f32 v{t+2+ee}, v{a+2}, v{a+3}')
        for i in range(4): e(f'v_mov_b32 v{t+4+i}, v{t+i}')
        for ee in range(2):
            e(f'v_mov_b32_dpp v{t+2+ee}, v{t+4+ee} row_ror:8 row_mask:0xf bank_mask:0x3')
            e(f'v_mov_b32_dpp v{t+ee}, v{t+6+ee} row_ror:8 row_mask:0xf bank_mask:0xc')
        e(f'buffer_store_dwordx4 {vr(t,4)}, v{vFR+4}, s[{sWS}:{sWS+3}], 0 offen sc1', tag='ys')
    def ja1():
        k.wait(vm='ja')
        e(f'ds_write_b64 v{vAW}, {vr(SA,2)}')
        e(f'ds_write_b64 v{vAW}, {vr(SA+2,2)} offset:512')
        e(f'ds_read_b64_tr_b16 {vr(SA+4,2)}, v{vAR}', tag='jt')
        e(f'ds_read_b64_tr_b16 {vr(SA+6,2)}, v{vAR} offset:512', tag='jt')
    def ja2():
        k.wait(lg='jt')
        for h in range(2):
            e(f'v_perm_b32 v{SA+8+2*h}, v{SA+6+h}, v{SA+4+h}, s{sP0}')
            e(f'v_perm_b32 v{SA+9+2*h}, v{SA+6+h}, v{SA+4+h}, s{sP1}')
        e(f'ds_write_b128 v{vAP}, {vr(SA+8,4)}')
    def ja3(): e(f'ds_read_b128 {vr(SA,4)}, v{vA}', tag='jp')
    def ja4(sfx):
        def body():
            e(f's_mov_b64 exec, 15')
            e(f'v_lshl_or_b32 v{SA+12}, v{SA+13}, 16, v{SA+12}')
            e(f'buffer_store_dword v{SA+12}, v{vA2}, s[{sWS}:{sWS+3}], s5 offen sc1')
            e('s_mov_b64 exec, -1')
        opt_block('s_cmp_lg_u32 s63, 0', f'PK_NOA2S{sfx}', body)
        k.wait(lg='jp')
        e(f'buffer_store_dwordx4 {vr(SA,4)}, v{vAd}, s[{sWS}:{sWS+3}], s7 offen sc1', tag='ys')
    def raise_flag(sflag, t):
        e(f'''
        s_mov_b64 exec, 0xff
        v_mov_b32 v{t}, s{sN}
        v_mov_b32 v{t+1}, s{sN+1}
        v_mov_b32 v{t+2}, s{sN}
        v_mov_b32 v{t+3}, s{sN+1}
        buffer_store_dwordx4 {vr(t,4)}, v{vLO}, s[{sWS}:{sWS+3}], s{sflag} offen sc1
        s_mov_b64 exec, -1
        s_nop 0
        ''')
    def w0_flag(sfx, sflag, t):
        opt_block(f's_cmp_lg_u32 s{sW}, 0', f'PK_NF{sfx}', lambda: raise_flag(sflag, t))
    def poll(label, vaddr, soff, t, sleep, scnt, first=True):
        ld = f'buffer_load_dwordx2 {vr(t,2)}, v{vaddr}, s[{sWS}:{sWS+3}], s{soff} offen sc1'
        e(f's_movk_i32 s{scnt}, {SPIN}')
        if first: e(f's_branch {label}L')
        e(f'''
        {label}C:
        v_cmp_ne_u64 vcc, s[{sN}:{sN+1}], {vr(t,2)}
        s_cbranch_vccz {label}G
        s_sub_u32 s{scnt}, s{scnt}, 1
        s_cbranch_scc1 {label}G
        s_sleep {sleep}
        {label}L:
        {ld}
        s_waitcnt vmcnt(0)
        s_branch {label}C
        {label}G:
        ''')
    def cnt_init():
        e(f'''
        v_mov_b32 v{vT}, {L_CNT}
        v_mov_b32 v{vT+2}, 0
        v_mov_b32 v{vT+3}, 0
        ds_write_b64 v{vT}, {vr(vT+2,2)} offset:8
        ''')
    def wd_pref(i, q):
        e(f's_add_u32 m0, s{sM0D}, {RROW[i] + q*1024}')
        if q == 0:
            e(f's_add_u32 s61, s{sDO}, 8192')
            e(f'buffer_load_dwordx4 v{vD}, s[{sWD}:{sWD+3}], s{sDO} offen lds', tag='wd')
        else:
            wrap(sDO, sDE, 32768)
            e(f'buffer_load_dwordx4 v{vD}, s[{sWD}:{sWD+3}], s61 offen lds', tag='wd')
    def wd_pref2(i, q):
        e(f's_add_u32 m0, s{sM0D}, {RROW[i] + q*1024}')
        if q == 0:
            e(f's_add_u32 s11, s{sDO}, 8192')
            e(f'buffer_load_dwordx4 v{vD}, s[{sWD}:{sWD+3}], s{sDO} offen lds', tag='wd')
        else:
            wrap(sDO, sDE, 32768)
            e(f'buffer_load_dwordx4 v{vD}, s[{sWD}:{sWD+3}], s11 offen lds', tag='wd')
    e(f'''
    s_lshr_b32 s10, s{sRB}, 2
    s_lshl_b32 s10, s10, 15
    s_and_b32 s11, s{sRB}, 3
    s_lshl_b32 s11, s11, 19
    s_add_u32 s10, s10, s11
    s_and_b32 s11, s{sW}, 2
    s_lshl_b32 s11, s11, 13
    s_add_u32 s10, s10, s11
    s_and_b32 s11, s{sW}, 4
    s_lshl_b32 s11, s11, 16
    s_add_u32 s10, s10, s11
    s_and_b32 s11, s{sW}, 1
    s_lshl_b32 s11, s11, 17
    s_add_u32 s{sXO}, s10, s11
    s_add_u32 s{sXO+1}, s{sXO}, 8192
    s_add_u32 s{sXO+2}, s{sXO}, 65536
    s_add_u32 s{sXO+3}, s{sXO}, 73728
    s_lshl_b32 s10, s{sW}, 12
    s_add_u32 s{sM0X}, s10, {XB}
    s_lshl_b32 s{sM0W}, s{sW}, 10
    s_lshl_b32 s10, s{sW}, 3
    v_add_u32 v{vT+4}, s10, v{vT+1}
    v_mul_u32_u24 v{vT+4}, 3584, v{vT+4}
    v_and_b32 v{vT+5}, 1, v{vT}
    v_xor_b32 v{vT+2}, v{vT+2}, v{vT+5}
    s_and_b32 s10, s{sW}, 1
    s_lshl_b32 s10, s10, 1
    v_xor_b32 v{vT+2}, s10, v{vT+2}
    v_lshlrev_b32 v{vT+2}, 5, v{vT+2}
    v_lshl_add_u32 v{vT+2}, v{vT+3}, 4, v{vT+2}
    v_add_u32 v{vW}, v{vT+4}, v{vT+2}
    s_lshl_b32 s{sWOFF}, s{sCG}, 7
    s_lshl_b32 s10, s{sRB}, 5
    s_add_u32 s10, s10, s{sCG}
    s_lshl_b32 s10, s10, 7
    s_add_u32 s{sFM}, s10, {OFF_FM}
    ''')
    def dma_m0(stage, idx):
        slot = stage % 3
        if idx < 2: e(f's_add_u32 m0, s{sM0W}, {slot*16384 + idx*8192}')
        else:
            imm = slot*32768 + (idx-2)*1024 - 128*stage
            if imm >= 0: e(f's_add_u32 m0, s{sM0X}, {imm}')
            else: e(f's_sub_u32 m0, s{sM0X}, {-imm}')
    def dma_ld(stage, idx):
        if idx < 2:
            e(f'buffer_load_dwordx4 v{vW}, s[{(sB0,sB1)[idx]}:{(sB0,sB1)[idx]+3}], s{sWOFF} offen lds', tag=('st', stage))
            if idx == 1: e(f's_add_u32 s{sWOFF}, s{sWOFF}, {3584*64}')
        else:
            q = idx - 2
            off = f' offset:{128*stage}' if stage else ''
            e(f'buffer_load_dwordx4 v{(vXa,vXb)[q&1]}, s[{sX}:{sX+3}], s{sXO+q} offen{off} lds', tag=('st', stage))
    def dma(stage, idx): dma_m0(stage, idx); dma_ld(stage, idx)
    for u in range(4): afrag(u)
    f1_addr()
    e(f'''
    s_lshr_b32 s10, s{sW}, 1
    s_lshl_b32 s10, s10, 13
    s_add_u32 s10, s10, {XB}
    v_add_u32 v{vXR}, s10, v{vT+2}
    v_xor_b32 v{vXR+1}, 64, v{vXR}
    v_add_u32 v{vXR+2}, 0x10000, v{vXR}
    v_add_u32 v{vXR+3}, 0x10000, v{vXR+1}
    v_bfe_u32 v{vT+2}, v{vL}, 2, 2
    v_lshl_add_u32 v{vT+4}, v{vT+1}, 3, v{vT+2}
    v_lshlrev_b32 v{vT+4}, 7, v{vT+4}
    v_bfe_u32 v{vT+3}, v{vL}, 3, 2
    s_and_b32 s10, s{sW}, 1
    s_lshl_b32 s10, s10, 1
    v_xor_b32 v{vT+3}, s10, v{vT+3}
    v_lshl_add_u32 v{vT+4}, v{vT+3}, 5, v{vT+4}
    v_and_b32 v{vT+3}, 3, v{vL}
    v_lshl_add_u32 v{vWR}, v{vT+3}, 3, v{vT+4}
    v_xor_b32 v{vWR+1}, 32, v{vWR}
    ''')
    k.pt('f0')
    k.wait(vm=('f1', 0)); e('s_barrier')
    k.pt('f1')
    nop = lambda: None
    f1_half(0, [lambda: (dma(0, 0), dma(0, 1)), lambda: dma(0, 2), lambda: dma(0, 3), ja1, lambda: dma(0, 4), lambda: dma(0, 5), nop, ja2])
    e('s_waitcnt lgkmcnt(0)')
    k.wait(vm=('f1', 1)); e('s_barrier')
    k.pt('f1b')
    ja3()
    f1_half(1, [lambda: ja4('F'), lambda: dma(1, 0), lambda: dma(1, 1), lambda: dma(1, 2), nop, lambda: dma(1, 3)])
    f1_out()
    k.pt('f2')
    k.wait(vm=('st', 0)); e('s_barrier')
    k.stamp(1); k.pt('s1')
    def read_list(T):
        st, ks = T >> 1, T & 1
        slot = st % 3; b = FR + 32*(T & 1)
        L = []
        def xr(j):
            a = vXR + ks + (2 if slot == 2 else 0)
            o = (slot*32768 if slot < 2 else 0) + j*2048
            L.append(f'ds_read_b128 {vr(b+4*j,4)}, v{a} offset:{o}')
        def wr_(arr, tt):
            o = slot*16384 + arr*8192 + ks*4096
            r = b + 16 + 8*arr + 4*tt
            L.append(f'ds_read_b64_tr_b16 {vr(r,2)}, v{vWR+tt} offset:{o}')
            L.append(f'ds_read_b64_tr_b16 {vr(r+2,2)}, v{vWR+tt} offset:{o+512}')
        wr_(0,0); xr(0); xr(1); wr_(0,1); xr(2); xr(3); wr_(1,0); wr_(1,1)
        return L
    def mfma(T, arr, tt, j):
        b = FR + 32*(T & 1); a = ACC + 32*arr + 16*tt + 4*j
        c = '0' if T == 0 else vr(a, 4)
        e(f'{M16} {vr(a,4)}, {vr(b+16+8*arr+4*tt,4)}, {vr(b+4*j,4)}, {c}')
    if diag: e('s_waitcnt lgkmcnt(0)')
    for r in read_list(0): e(r)
    dma(1, 4); dma(1, 5)
    fill = {T: [] for T in range(16)}
    def F(T, fn): fill[T].append(fn)
    PST = 0 if 'late' not in opt else 1
    F(2*PST+1, lambda: w0_flag('F', sFP, SA+8))
    F(6, cnt_init)
    wdq = {11: [(0,0),(0,1),(1,0)], 12: [(1,1),(2,0),(2,1)], 13: [(3,0),(3,1),(4,0)], 14: [(4,1),(5,0),(5,1)]}
    c0 = -2*math.sqrt(2/math.pi)*math.log2(math.e); c1 = c0*0.044715
    vC0, vC1, vONE = 16, 18, 20
    for c in (f'v_mov_b32 v{vC0}, {f2u(c0):#x}\nv_mov_b32 v{vC0+1}, {f2u(c0):#x}',
              f'v_mov_b32 v{vC1}, {f2u(c1):#x}\nv_mov_b32 v{vC1+1}, {f2u(c1):#x}',
              f'v_mov_b32 v{vONE}, 1.0\nv_mov_b32 v{vONE+1}, 1.0',
              f's_lshl_b32 s10, s{sRB}, 2\ns_lshr_b32 s11, s{sW}, 1',
              f's_add_u32 s3, s10, s11\ns_mul_i32 s10, s3, 56',
              f's_lshl_b32 s11, s{sCG}, 1\ns_and_b32 s61, s{sW}, 1',
              f's_add_u32 s11, s11, s61\ns_add_u32 s10, s10, s11',
              f's_lshl_b32 s10, s10, 12'):
        F(15, lambda c=c: e(c))
    pend = [(2, i) for i in range(6)]
    order = [(0,0,0),(0,0,1),(0,1,0),(0,1,1),(0,0,2),(0,1,2),(0,0,3),(0,1,3)] + [(1,tt,j) for tt in range(2) for j in range(4)]
    prio = 'noprio' not in opt
    for T in range(16):
        st, ks = T >> 1, T & 1
        k.pt(f'a{T}')
        e('s_waitcnt lgkmcnt(0)')
        if ks == 1 and st < 7:
            k.wait(vm=[('st', st+1)] + (['ys'] if st == PST else []))
            k.pt(f'w{T}')
            e('s_barrier')
            k.pt(f'c{T}')
            if st + 3 < 8: pend += [(st+3, i) for i in range(6)]
        rd = read_list(T+1) if T < 15 else []
        fl_ = list(fill[T]); wq = list(wdq.get(T, []))
        dslots = (3, 8, 13) if T > 2 else (3, 7, 11, 14)
        for i, (arr, tt, j) in enumerate(order):
            if prio and T < 15 and i in (0, 8) and T >= 1: e(f's_setprio {(3 if ks else 1) - (i >> 3)}')
            if (i in dslots) and pend: dma_m0(*pend[0])
            mfma(T, arr, tt, j)
            if (i in dslots) and pend: dma_ld(*pend.pop(0))
            elif (i in dslots) and wq: wd_pref(*wq.pop(0))
            elif rd:
                e(rd.pop(0))
                if rd and i < 6: e(rd.pop(0))
            elif fl_: fl_.pop(0)()
        while fl_: fl_.pop(0)()
        assert not rd and not wq
    k.stamp(2); k.pt('s2')
    for j in range(4):
        G = [ACC + 16*tt + 4*j + h for tt in range(2) for h in (0, 2)]
        U = [g + 32 for g in G]
        t = FR + 16*j
        for i in range(4): e(f'v_pk_mul_f32 {P(t+2*i)}, {P(G[i])}, {P(G[i])}')
        for i in range(4): e(f'v_pk_fma_f32 {P(t+2*i)}, {P(t+2*i)}, {P(vC1)}, {P(vC0)}')
        for i in range(4): e(f'v_pk_mul_f32 {P(t+2*i)}, {P(t+2*i)}, {P(G[i])}')
        for i in range(8): e(f'v_exp_f32 v{t+i}, v{t+i}')
        for i in range(4): e(f'v_pk_mul_f32 {P(G[i])}, {P(G[i])}, {P(U[i])}')
        for i in range(4): e(f'v_pk_add_f32 {P(t+2*i)}, {P(t+2*i)}, {P(vONE)}')
        for i in range(8): e(f'v_rcp_f32 v{t+i}, v{t+i}')
        for i in range(4): e(f'v_pk_mul_f32 {P(G[i])}, {P(G[i])}, {P(t+2*i)}')
        for i in range(4): e(f'v_cvt_pk_bf16_f32 v{t+8+i}, v{G[i]}, v{G[i]+1}')
        e(f'buffer_store_dwordx4 {vr(t+8,4)}, v{vLO}, s[{sWS}:{sWS+3}], s10 offen offset:{j*1024} sc1')
        if j == 0 and 'epprio' in opt: e('s_setprio 1')
    e('s_nop 1')
    e('s_branch PK_P2')
    k.raw('PK_FFT:')
    k.vm = list(vm_common); k.lg = []
    GWF = 88
    GB_ = 120
    GA_ = 136
    vGR = 140
    GLB = 0
    e(f'''
    s_mov_b32 s{sGW}, s18
    s_mov_b32 s{sGW+1}, s19
    s_mov_b32 s{sGW+2}, 1024
    s_mov_b32 s{sGW+3}, 0x20000
    v_lshlrev_b32 v{vT+3}, 4, v{vT}
    s_lshr_b32 s65, s{sW}, 2
    s_lshl_b32 s10, s65, 6
    ''')
    for u in range(8):
        e(f'buffer_load_dwordx4 {vr(GWF+4*u,4)}, v{vT+3}, s[{sGW}:{sGW+3}], s10 offen offset:{128*u}', tag='gw')
    for u in range(4): afrag(u)
    f1_addr()
    e(f'''
    s_lshl_b32 s10, s65, 6
    v_xor_b32 v{vGR}, s10, v{vT+2}
    s_lshl_b32 s10, s{sWA}, 11
    v_add_u32 v{vGR}, s10, v{vGR}
    v_add_u32 v{vGR+1}, {F1SLAB[2]}, v{vGR}
    ; Z flag: ((q>>2)*32 + 28 + (q&3))*128
    s_lshl_b32 s10, s{sRB}, 5
    s_and_b32 s11, s{sMF}, 3
    s_add_u32 s10, s10, s11
    s_add_u32 s10, s10, 28
    s_lshl_b32 s10, s10, 7
    s_add_u32 s{sFM}, s10, {OFF_FM}
    ''')
    def gate_half(hf):
        for i in range(4):
            sl = 4*hf + i
            e(f'ds_read_b128 {vr(GB_+4*i,4)}, v{vGR + (1 if sl < 6 else 0)} offset:{F1SLAB[sl] - (F1SLAB[2] if sl < 6 else 0)}', tag=('gb', i))
        k.wait(vm='gw')
        for i in range(4):
            k.wait(lg=('gb', i))
            e(f'{M16} {vr(GA_,4)}, {vr(GWF+16*hf+4*i,4)}, {vr(GB_+4*i,4)}, {"0" if hf + i == 0 else vr(GA_,4)}')
    k.pt('f0')
    k.wait(vm=('f1', 0)); e('s_barrier')
    k.pt('f1')
    f1_half(0, [nop, nop, nop, ja1, nop, nop, nop, ja2])
    gate_half(0)
    e('s_waitcnt lgkmcnt(0)')
    e('s_barrier')
    ja3()
    f1_half(1, [lambda: ja4('X')])
    f1_out()
    gate_half(1)
    e(f'''
    s_lshl_b32 s10, s{sW}, 6
    s_add_u32 s10, s10, {GLB}
    v_lshl_add_u32 v{vT}, v{vL}, 2, s10
    s_mov_b64 exec, 0xffff
    ds_write_b32 v{vT}, v{GA_}
    s_mov_b64 exec, -1
    s_waitcnt lgkmcnt(0)
    ''')
    k.pt('f2')
    e('s_barrier')
    def gate():
        e(f'''
        ds_read_b32 v{vT+4}, v{vA2} offset:{GLB}
        ds_read_b32 v{vT+5}, v{vA2} offset:{GLB+256}
        v_and_b32 v{vT}, 32, v{vL}
        v_and_b32 v{vT+1}, 7, v{vL}
        v_lshl_add_u32 v{vT}, v{vT+1}, 2, v{vT}
        v_bfe_u32 v{vT+1}, v{vL}, 3, 1
        v_lshl_add_u32 v{vT}, v{vT+1}, 1, v{vT}
        v_bfe_u32 v{vT+1}, v{vL}, 4, 1
        v_add_lshl_u32 v{vT}, v{vT}, v{vT+1}, 2
        s_lshl_b32 s10, s{sMF}, 8
        s_add_u32 s10, s10, {OFF_G}
        s_waitcnt lgkmcnt(0)
        v_add_f32 v{vT+4}, v{vT+4}, v{vT+5}
        v_mul_f32 v{vT+4}, {f2u(-math.log2(math.e)):#x}, v{vT+4}
        v_exp_f32 v{vT+4}, v{vT+4}
        v_add_f32 v{vT+4}, 1.0, v{vT+4}
        v_rcp_f32 v{vT+4}, v{vT+4}
        s_nop 0
        buffer_store_dword v{vT+4}, v{vT}, s[{sWS}:{sWS+3}], s10 offen sc1
        s_nop 0
        ''')
    opt_block(f's_cmp_lg_u32 s{sW}, 2', 'PK_NOG', gate)
    k.pt('x1')
    DY = 24; AC = 56; CE = 120; CO = 152; WRW = 184; TW = 216; TM = 16
    TN = 248
    vCA, vCB, vKP = 3, 4, 5
    vCol, vIdx, vB2, vTH0 = 6, 7, 8, 9
    def angles(dst, base, th0, ks):
        for i, kk in enumerate(ks):
            if kk == 0: e(f'v_mov_b32 v{dst+i}, v{th0}')
            else: e(f'v_fmamk_f32 v{dst+i}, v{base}, {f2u(float(kk)):#x}, v{th0}')
    e(f'''
    v_and_b32 v{vCol}, 31, v{vL}
    v_lshrrev_b32 v{vIdx}, 5, v{vL}
    v_lshlrev_b32 v{vIdx}, 2, v{vIdx}
    s_lshl_b32 s10, s{sWA}, 3
    v_add_u32 v{vIdx}, s10, v{vIdx}          ; 8t + 4hh
    v_cvt_f32_u32 v{vCol}, v{vCol}
    v_cvt_f32_u32 v{vIdx}, v{vIdx}
    v_add_u32 v{vCA}, {AROW[0]}, v{vLO}
    v_add_u32 v{vCB}, {AROW[1]}, v{vLO}
    v_add_u32 v{vKP}, {L_SP}, v{vLO}
    s_lshl_b32 s10, s{sWA}, 10
    v_add_u32 v10, s10, v{vCA}
    v_add_u32 v11, s10, v{vCB}
    s_cmp_lg_u32 s65, 0
    s_cbranch_scc1 PK_XTW
    ''')
    def tab_pk(addr, off, r):
        for i in range(4): e(f'v_sin_f32 v{r+4+i}, v{r+i}')
        for i in range(4): e(f'v_cos_f32 v{r+i}, v{r+i}')
        for i in range(4): e(f'v_cvt_pk_bf16_f32 v{r+8+i}, v{r+i}, v{r+4+i}')
        for i in range(4): e(f'v_cvt_pk_bf16_f32 v{r+12+i}, -v{r+4+i}, v{r+i}')
        e(f'ds_write_b128 v{addr}, {vr(r+8,4)} offset:{off}')
        e(f'ds_write_b128 v{addr}, {vr(r+12,4)} offset:{off+4096}')
    def tab_f32(addr, off, r):
        for i in range(4): e(f'v_sin_f32 v{r+4+i}, v{r+i}')
        for i in range(4): e(f'v_cos_f32 v{r+i}, v{r+i}')
        e(f'ds_write_b128 v{addr}, {vr(r+4,4)} offset:{off+4096}')
        e(f'ds_write_b128 v{addr}, {vr(r,4)} offset:{off}')
    e(f'v_mul_f32 v{vB2}, {fl(1/32)}, v{vCol}\nv_mul_f32 v{vTH0}, v{vB2}, v{vIdx}')
    angles(AC, vB2, vTH0, [0,1,2,3]); tab_pk(10, 0, AC)
    e(f'v_fmamk_f32 v{vTH0}, v{vB2}, {f2u(0.5):#x}, v{vTH0}')
    angles(AC+16, vB2, vTH0, [0,1,2,3]); tab_pk(10, 8192, AC+16)
    e(f'v_add_f32 v{vB2}, {fl(1/64)}, v{vB2}\nv_mul_f32 v{vTH0}, v{vB2}, v{vIdx}')
    angles(AC+32, vB2, vTH0, [0,1,2,3]); tab_pk(11, 0, AC+32)
    e('s_branch PK_XTD')
    e('PK_XTW:')
    e(f'v_mul_f32 v{vB2}, {fl(1/2048)}, v{vCol}\nv_mul_f32 v{vTH0}, v{vB2}, v{vIdx}')
    angles(AC, vB2, vTH0, [0,1,2,3]); tab_f32(11, 8192, AC)
    angles(AC+16, vB2, vTH0, [32,33,34,35]); tab_f32(11, 24576, AC+16)
    e(f'v_add_f32 v{vB2}, {fl(32/2048)}, v{vB2}\nv_mul_f32 v{vTH0}, v{vB2}, v{vIdx}')
    angles(AC+32, vB2, vTH0, [0,1,2,3]); tab_f32(11, 16384, AC+32)
    e('PK_XTD:')
    e('s_waitcnt vmcnt(0) lgkmcnt(0)')
    e('s_barrier')
    w0_flag('X', sFP, TN)
    k.pt('x2')
    for i in range(8): e(f'ds_read_b128 {vr(CE+4*i,4)}, v{vCA} offset:{i*1024}')
    e(f'''
    s_lshl_b32 s10, s{sMF}, 3
    s_add_u32 s62, s10, s{sW}                ; column k
    s_lshl_b32 s10, s62, 13
    s_add_u32 s66, s10, {OFF_Y}
    s_add_u32 s61, s10, {OFF_WT}
    s_add_u32 s67, s10, {OFF_Z}
    s_mov_b32 s63, 0                         ; pass
    s_cmp_lg_u32 s{sW}, 0
    s_cbranch_scc1 PK_XGO
    v_lshlrev_b32 v{TM}, 7, v{vL}
    s_lshr_b32 s10, s{sMF}, 3
    s_lshl_b32 s10, s10, 13
    s_add_u32 s10, s10, {OFF_FP}
    ''')
    poll('PK_XP', TM, 10, TM+2, 1, 11)
    e(f'''
    PK_XGO:
    s_barrier
    s_add_u32 s10, s66, 4096
    s_add_u32 s11, s61, 4096
    ''')
    k.vm = []
    k.stamp(1); k.pt('x3')
    for i in range(8):
        e(f'buffer_load_dwordx4 {vr(DY+4*i,4)}, v{vLO}, s[{sWS}:{sWS+3}], s{(66,10)[i>>2]} offen offset:{(i&3)*1024} sc1', tag=('y', i))
    for i in range(8):
        e(f'buffer_load_dwordx4 {vr(WRW+4*i,4)}, v{vLO}, s[{sWS}:{sWS+3}], s{(61,11)[i>>2]} offen offset:{(i&3)*1024} sc1', tag=('w', i))
    def keep0():
        e('s_waitcnt vmcnt(8)')
        for i in range(8): e(f'ds_write_b128 v{vKP}, {vr(DY+4*i,4)} offset:{i*1024}')
        e('s_nop 1')
        for i in range(32): e(f'v_and_b32 v{DY+i}, 0xffff, v{DY+i}')
        e('s_nop 1')
    lg = list(k.lg)
    opt_block('s_cmp_lg_u32 s62, 0', 'PK_XPASS', keep0)
    acc = lambda x, c: AC + 32*x + 16*c
    for i in range(8): e(f'ds_read_b128 {vr(CO+4*i,4)}, v{vCA} offset:{8192 + i*1024}')
    e('s_waitcnt lgkmcnt(0)')
    def tw_read(t, offb):
        r = TW + 16*(t & 1)
        e(f'ds_read_b128 {vr(r,4)}, v{vCB} offset:{8192 + t*1024}', tag=('tw', t))
        e(f'ds_read_b128 {vr(r+4,4)}, v{vCB} offset:{8192 + 4096 + t*1024}', tag=('tw', t))
        e(f'ds_read_b128 {vr(r+8,4)}, v{vCB} offset:{offb + t*1024}', tag=('tw', t))
        e(f'ds_read_b128 {vr(r+12,4)}, v{vCB} offset:{offb + 4096 + t*1024}', tag=('tw', t))
    NG2 = 'neg_lo:[0,0,1] neg_hi:[0,0,1]'; NG1 = 'neg_lo:[0,1] neg_hi:[0,1]'
    def cmul(dr, di, re, im, C, S_):
        for h in (0, 2):
            e(f'v_pk_mul_f32 {P(dr+h)}, {P(im+h)}, {P(S_+h)}')
            e(f'v_pk_mul_f32 {P(di+h)}, {P(re+h)}, {P(S_+h)}')
        for h in (0, 2):
            e(f'v_pk_fma_f32 {P(dr+h)}, {P(re+h)}, {P(C+h)}, {P(dr+h)}')
            e(f'v_pk_fma_f32 {P(di+h)}, {P(im+h)}, {P(C+h)}, {P(di+h)} {NG2}')
    k.pt('r0')
    tw_read(0, 16384); tw_read(1, 16384)
    for x, Cx in ((0, CE), (1, CO)):
        for t in range(4):
            k.wait(vm=('y', 4*x+t))
            for c in range(2):
                e(f'{M32} {vr(acc(x,c),16)}, {vr(DY+16*x+4*t,4)}, {vr(Cx+16*c+4*t,4)}, {"0" if t == 0 else vr(acc(x,c),16)}')
    for t in range(4):
        er, ei, orr, oi = acc(0,0)+4*t, acc(0,1)+4*t, acc(1,0)+4*t, acc(1,1)+4*t
        for h in (0, 2):
            e(f'v_pk_add_f32 {P(TM+h)}, {P(er+h)}, {P(orr+h)} {NG1}')
            e(f'v_pk_add_f32 {P(TM+4+h)}, {P(ei+h)}, {P(oi+h)} {NG1}')
            e(f'v_pk_add_f32 {P(er+h)}, {P(er+h)}, {P(orr+h)}')
            e(f'v_pk_add_f32 {P(ei+h)}, {P(ei+h)}, {P(oi+h)}')
        k.wait(lg=('tw', t))
        r = TW + 16*(t & 1)
        cmul(orr, oi, er, ei, r, r+4)
        cmul(TN, TN+4, TM, TM+4, r+8, r+12)
        if t < 2: tw_read(t+2, 16384)
        for i in range(4): e(f'v_cvt_pk_bf16_f32 v{DY+4*t+i}, v{orr+i}, v{oi+i}')
        for i in range(4): e(f'v_cvt_pk_bf16_f32 v{DY+16+4*t+i}, v{TN+i}, v{TN+4+i}')
    k.pt('r1')
    for i in range(8): e(f'ds_read_b128 {vr(CO+4*i,4)}, v{vCB} offset:{i*1024}', tag='co')
    for x in range(2):
        for t in range(4):
            for c in range(2):
                e(f'{M32} {vr(acc(x,c),16)}, {vr(CE+16*c+4*t,4)}, {vr(DY+16*x+4*t,4)}, {"0" if t == 0 else vr(acc(x,c),16)}')
    for x in range(2):
        for t in range(4):
            k.wait(vm=('w', 4*x+t))
            wq_ = WRW + 16*x + 4*t
            re, im = acc(x,0)+4*t, acc(x,1)+4*t
            for i in range(4):
                e(f'v_lshlrev_b32 v{TM+i}, 16, v{wq_+i}')
                e(f'v_and_b32 v{TM+4+i}, 0xffff0000, v{wq_+i}')
            for h in (0, 2):
                e(f'v_pk_mul_f32 {P(TN+h)}, {P(im+h)}, {P(TM+4+h)}')
                e(f'v_pk_mul_f32 {P(TN+4+h)}, {P(re+h)}, {P(TM+4+h)}')
            for h in (0, 2):
                e(f'v_pk_fma_f32 {P(TN+h)}, {P(re+h)}, {P(TM+h)}, {P(TN+h)} {NG2}')
                e(f'v_pk_fma_f32 {P(TN+4+h)}, {P(im+h)}, {P(TM+h)}, {P(TN+4+h)}')
            for i in range(4): e(f'v_cvt_pk_bf16_f32 v{DY+16*x+4*t+i}, v{TN+4+i}, v{TN+i}')
    k.pt('r2')
    def mid():
        def w256():
            e(f's_mov_b32 s10, {OFF_WT + 256*8192}\ns_mov_b32 s11, {OFF_WT + 256*8192 + 4096}')
            for i in range(8):
                e(f'buffer_load_dwordx4 {vr(WRW+4*i,4)}, v{vLO}, s[{sWS}:{sWS+3}], s{10+(i>>2)} offen offset:{(i&3)*1024} sc1')
        opt_block('s_cmp_lg_u32 s62, 0', 'PK_XNW', w256)
        for i in range(3):
            for q in range(2): wd_pref2(i, q)
    opt_block('s_cmp_lg_u32 s63, 0', 'PK_XM1', mid)
    k.wait(lg='co')
    tw_read(0, 24576); tw_read(1, 24576)
    for x in range(2):
        for t in range(4):
            for c in range(2):
                e(f'{M32} {vr(acc(x,c),16)}, {vr(DY+16*x+4*t,4)}, {vr(CE+16*c+4*t,4)}, {"0" if t == 0 else vr(acc(x,c),16)}')
    for t in range(4):
        ar, ai, br, bi = acc(0,0)+4*t, acc(0,1)+4*t, acc(1,0)+4*t, acc(1,1)+4*t
        k.wait(lg=('tw', t))
        r = TW + 16*(t & 1)
        cmul(TM, TM+4, ar, ai, r, r+4)
        cmul(TN, TN+4, br, bi, r+8, r+12)
        if t < 2: tw_read(t+2, 24576)
        for h in (0, 2):
            e(f'v_pk_add_f32 {P(ar+h)}, {P(TM+h)}, {P(TN+h)}')
            e(f'v_pk_add_f32 {P(ai+h)}, {P(TM+4+h)}, {P(TN+4+h)}')
            e(f'v_pk_add_f32 {P(br+h)}, {P(TM+h)}, {P(TN+h)} {NG1}')
            e(f'v_pk_add_f32 {P(bi+h)}, {P(TM+4+h)}, {P(TN+4+h)} {NG1}')
        for i in range(4): e(f'v_cvt_pk_bf16_f32 v{DY+4*t+i}, v{ar+i}, v{ai+i}')
        for i in range(4): e(f'v_cvt_pk_bf16_f32 v{DY+16+4*t+i}, v{br+i}, v{bi+i}')
    k.pt('r3')
    def mid2():
        for i in range(3, 6):
            for q in range(2): wd_pref2(i, q)
    opt_block('s_cmp_lg_u32 s63, 0', 'PK_XM2', mid2)
    for x, Cx in ((0, CE), (1, CO)):
        for t in range(4):
            for c in range(2):
                e(f'{M32} {vr(acc(x,c),16)}, {vr(Cx+16*c+4*t,4)}, {vr(DY+16*x+4*t,4)}, {"0" if t == 0 else vr(acc(x,c),16)}')
    e(f's_add_u32 s10, s67, 4096')
    e(f's_cmp_eq_u32 s62, 0')
    e(f's_cbranch_scc1 PK_XSP')
    for x in range(2):
        for t in range(4):
            for i in range(4): e(f'v_cvt_pk_bf16_f32 v{DY+16*x+4*t+i}, v{acc(x,1)+4*t+i}, v{acc(x,0)+4*t+i}')
            e(f'buffer_store_dwordx4 {vr(DY+16*x+4*t,4)}, v{vLO}, s[{sWS}:{sWS+3}], s{(67,10)[x]} offen offset:{t*1024} sc1')
    e('s_branch PK_XDONE')
    e('PK_XSP:')
    e('s_nop 11')
    for i in range(8): e(f'ds_read_b128 {vr(DY+4*i,4)}, v{vKP} offset:{i*1024}')
    for x in range(2):
        for i in range(16): e(f'v_cvt_pk_bf16_f32 v{acc(x,0)+i}, v{acc(x,1)+i}, v{acc(x,1)+i}')
    e('s_waitcnt lgkmcnt(0)')
    e(f's_cmp_lg_u32 s63, 0')
    e(f's_cbranch_scc1 PK_XSP2')
    for x in range(2):
        for t in range(4): e(f'ds_write_b128 v{vKP}, {vr(acc(x,0)+4*t,4)} offset:{(4*x+t)*1024}')
    for i in range(32): e(f'v_lshrrev_b32 v{DY+i}, 16, v{DY+i}')
    e('s_mov_b32 s63, 1')
    e('s_waitcnt vmcnt(0) lgkmcnt(0)')
    e('s_branch PK_XPASS')
    e('PK_XSP2:')
    for x in range(2):
        for t in range(4):
            for i in range(4): e(f'v_perm_b32 v{DY+16*x+4*t+i}, v{acc(x,0)+4*t+i}, v{DY+16*x+4*t+i}, s{sP0}')
            e(f'buffer_store_dwordx4 {vr(DY+16*x+4*t,4)}, v{vLO}, s[{sWS}:{sWS+3}], s{(67,10)[x]} offen offset:{t*1024} sc1')
    e('PK_XDONE:')
    k.stamp(2); k.pt('x4')
    cnt_init()
    e('''
    s_waitcnt vmcnt(0) lgkmcnt(0)
    s_barrier
    ''')
    w0_flag('Z', sFM, TN)
    e(f's_mov_b32 s{sFM}, {WS_USED}')
    k.raw('PK_P2:')
    k.stamp(3); k.pt('s3')
    vT = 4
    ACC = 16; vG = 80
    OWN = 84; vGO = 100; RD = 104
    def count_m(sfx, t0):
        e(f'''
        s_waitcnt vmcnt(0)
        v_mov_b32 v{t0}, {L_CNT+12}
        v_mov_b32 v{t0+1}, 1
        s_mov_b64 exec, 1
        ds_add_rtn_u32 v{t0}, v{t0}, v{t0+1}
        s_waitcnt lgkmcnt(0)
        v_readfirstlane_b32 s11, v{t0}
        s_cmp_lg_u32 s11, 7
        s_mov_b64 exec, -1
        s_cbranch_scc1 PK_NOM{sfx}
        ''')
        raise_flag(sFM, 252)
        e(f'PK_NOM{sfx}:')
        k.vm = []
    def lds_spin(label, off, target, t0, sleep=0):
        e(f'''
        v_mov_b32 v{t0}, {L_CNT+off}
        {label}:
        {f"s_sleep {sleep}" if sleep else ""}
        ds_read_b32 v{t0+1}, v{t0}
        s_waitcnt lgkmcnt(0)
        v_readfirstlane_b32 s11, v{t0+1}
        s_cmp_lt_u32 s11, {target}
        s_cbranch_scc1 {label}
        ''')
    def lds_inc(off, t0):
        e(f'''
        v_mov_b32 v{t0}, {L_CNT+off}
        v_mov_b32 v{t0+1}, 1
        s_mov_b64 exec, 1
        ds_add_u32 v{t0}, v{t0+1}
        s_mov_b64 exec, -1
        ''')
    def scatter(rows, tag):
        e(f's_lshl_b32 s3, s{sWA}, 12')
        for o in range(4):
            e(f'''
            s_sub_u32 s10, {o+3}, s{sWA}
            s_and_b32 s10, s10, 3
            s_cmp_eq_u32 s10, 3
            s_cbranch_scc1 PK_SK{tag}{o}
            s_mov_b32 s11, {rows[2]}
            s_cmp_eq_u32 s10, 1
            s_cselect_b32 s11, {rows[1]}, s11
            s_cmp_eq_u32 s10, 0
            s_cselect_b32 s11, {rows[0]}, s11
            s_add_u32 s11, s11, s3
            v_add_u32 v{vT+1}, s11, v{vLO}
            ''')
            for dt in range(4):
                e(f'ds_write_b128 v{vT+1}, {vr(ACC+16*o+4*dt,4)} offset:{dt*1024}')
            e(f's_branch PK_SN{tag}{o}')
            e(f'PK_SK{tag}{o}:')
            for i in range(0, 16, 2): e(f'v_pk_add_f32 {vr(OWN+i,2)}, {vr(ACC+16*o+i,2)}, 0 op_sel_hi:[1,0]')
            if tag == 'A': e(f'v_mov_b32 v{vGO}, v{vG+o}')
            e(f'PK_SN{tag}{o}:')
    def gather_addr(rows, r0):
        for p in range(3):
            e(f'''
            s_add_u32 s10, s{sWA}, {3-p}
            s_and_b32 s10, s10, 3
            s_lshl_b32 s10, s10, 12
            s_add_u32 s10, s10, {rows[p]}
            v_add_u32 v{r0+p}, s10, v{vLO}
            ''')
    e(f's_cmp_lt_u32 s{sW}, 4')
    e(f's_cbranch_scc1 PK_A')
    WA = 84; HB = 180; vTR = 244
    sH, sHE = 64, 65
    e(f'''
    s_setprio 1
    v_lshrrev_b32 v{vT}, 2, v{vL}
    v_lshlrev_b32 v{vT}, 7, v{vT}
    v_bfe_u32 v{vT+1}, v{vL}, 3, 2
    v_lshl_add_u32 v{vT}, v{vT+1}, 5, v{vT}
    v_and_b32 v{vT+1}, 3, v{vL}
    v_lshl_add_u32 v{vT}, v{vT+1}, 3, v{vT}
    s_lshl_b32 s{sM0D}, s{sWA}, 12
    v_add_u32 v{vTR}, s{sM0D}, v{vT}
    v_xor_b32 v{vTR+1}, 32, v{vTR}
    v_xor_b32 v{vTR+2}, 64, v{vTR}
    v_xor_b32 v{vTR+3}, 96, v{vTR}
    s_mul_i32 s11, s{sWA}, 14
    s_add_u32 s10, s{sR0}, 6
    s_cmp_ge_u32 s10, 14
    s_cselect_b32 s3, 14, 0
    s_sub_u32 s10, s10, s3
    s_add_u32 s10, s10, s11
    s_lshl_b32 s{sDO}, s10, 15
    s_lshl_b32 s3, s{sNT}, 7
    s_add_u32 s{sDO}, s{sDO}, s3
    s_add_u32 s{sDE}, s11, 14
    s_lshl_b32 s{sDE}, s{sDE}, 15
    s_add_u32 s{sDE}, s{sDE}, s3
    s_mul_i32 s10, s{sMT}, 56
    s_add_u32 s10, s10, s11
    s_add_u32 s{sH}, s10, s{sR0}
    s_lshl_b32 s{sH}, s{sH}, 12
    s_add_u32 s{sHE}, s10, 14
    s_lshl_b32 s{sHE}, s{sHE}, 12
    v_min_u32 v{vT+2}, 6, v{vL}
    v_lshlrev_b32 v{vT+2}, 7, v{vT+2}
    s_lshr_b32 s10, s{sMT}, 2
    s_lshl_b32 s10, s10, 5
    s_mul_i32 s11, s{sWA}, 7
    s_add_u32 s10, s10, s11
    s_lshl_b32 s10, s10, 7
    s_add_u32 s66, s10, {OFF_FM}
    ''')
    count_m('B', vT)
    k.pt('b1')
    lds_spin('PK_BSP', 12, 8, vT)
    k.pt('b2')
    def tr_list(i):
        row = RROW[i % 6]; L = []
        if row >= 65536 - 4096:
            L.append('\n'.join(f'v_add_u32 v{vTR+4+dt}, {row}, v{vTR+dt}' for dt in range(4)))
            a0, off = vTR+4, 0
        else: a0, off = vTR, row
        for dt in range(4):
            r = WA + 16*(i % 6) + 4*dt
            L.append(f'ds_read_b64_tr_b16 {vr(r,2)}, v{a0+dt} offset:{off}\nds_read_b64_tr_b16 {vr(r+2,2)}, v{a0+dt} offset:{off+2048}')
        return L
    def wd_dma(i, q):
        e(f's_add_u32 m0, s{sM0D}, {RROW[i % 6] + q*1024}')
        if q: e(f's_add_u32 s61, s{sDO}, {8192*q}')
        e(f'buffer_load_dwordx4 v{vD}, s[{sWD}:{sWD+3}], s{61 if q else sDO} offen lds', tag=('wd', i))
        if q == 3: wrap(sDO, sDE, 32768)
    npre = 3
    for o in opt:
        if o.startswith('npre'): npre = int(o[4:])
    for i in range(6):
        for x in tr_list(i): e(x, tag=('tr', i))
        if 1 <= i <= npre:
            k.wait(lg=('tr', i-1))
            for q in range(4): wd_dma(i+5, q)
    k.wait(lg=('tr', 5))
    if npre == 6:
        for q in range(4): wd_dma(11, q)
    k.stamp(4); k.pt('b4')
    poll('PK_BP', vT+2, 66, vT+4, slp, 67)
    k.stamp(5); k.pt('b5')
    nld = [0]
    def ld():
        n = nld[0]; nld[0] += 1
        if n >= 56: return
        s, j = n >> 2, n & 3
        e(f'buffer_load_dwordx4 {vr(HB+16*(s%4)+4*j,4)}, v{vLO}, s[{sWS}:{sWS+3}], s{sH} offen offset:{j*1024} sc1', tag=('h', s, j))
        if j == 3: wrap(sH, sHE, 4096)
    while nld[0] < ahead: ld()
    nxt = 6 + npre
    dma_at = {}
    s_ = 0
    for i in range(nxt, 14):
        s_ = max(s_, (i - 10) if i >= 12 else 0)
        dma_at[s_] = i; s_ += 1
    rd_at = {}
    for i in range(6, 14):
        s0 = i - 5
        for ss, ii in dma_at.items():
            if ii == i: s0 = max(s0, ss + 3)
        while s0 in rd_at: s0 += 1
        assert s0 < i
        rd_at[s0] = i
    for s in range(14):
        extra = []
        if s in rd_at:
            i = rd_at[s]
            extra.append(lambda i=i: k.wait(vm=('wd', i)))
            extra += [(lambda x=x, i=i: e(x, tag=('tr', i))) for x in tr_list(i)]
        if s in dma_at:
            i = dma_at[s]
            if i >= 12:
                assert [ss for ss, ii in rd_at.items() if ii == i-6][0] < s
                extra.append(lambda i=i: k.wait(lg=('tr', i-6)))
            extra += [(lambda q=q, i=i: wd_dma(i, q)) for q in range(4)]
        if s >= 6: k.wait(lg=('tr', s))
        for j in range(4):
            k.wait(vm=('h', s, j))
            for dt in range(4):
                a = ACC + 16*j + 4*dt
                e(f'{M16} {vr(a,4)}, {vr(WA+16*(s%6)+4*dt,4)}, {vr(HB+16*(s%4)+4*j,4)}, {"0" if s == 0 else vr(a,4)}')
                if dt == 0: ld()
                elif extra: extra.pop(0)()
        assert not extra
    k.stamp(6); k.pt('b6')
    k.pad()
    scatter(BROW, 'B')
    gather_addr(BROW, vT+4)
    e(f'''
    s_add_u32 s10, s{sWA}, 3
    s_and_b32 s10, s10, 3
    s_lshl_b32 s10, s10, 12
    s_add_u32 s10, s10, {AROW[0]}
    v_add_u32 v{vT+2}, s10, v{vLO}
    s_lshl_b32 s10, s{sWA}, 8
    s_add_u32 s10, s10, {L_SP}
    v_lshl_add_u32 v{vT}, v{vL}, 2, s10
    v_and_b32 v{vT+3}, 15, v{vL}
    v_lshlrev_b32 v{vT+3}, 10, v{vT+3}
    v_lshrrev_b32 v{vT+7}, 4, v{vL}
    v_lshl_add_u32 v{vT+3}, v{vT+7}, 5, v{vT+3}
    s_lshr_b32 s11, s{sMT}, 4
    s_lshl_b32 s10, s11, 15
    s_and_b32 s11, s{sMT}, 14
    s_lshl_b32 s11, s11, 17
    s_add_u32 s10, s10, s11
    s_and_b32 s11, s{sMT}, 1
    s_lshl_b32 s11, s11, 14
    s_add_u32 s10, s10, s11
    s_lshl_b32 s11, s{sWA}, 16
    s_add_u32 s10, s10, s11
    s_lshl_b32 s11, s{sNT}, 7
    s_add_u32 s10, s10, s11
    s_mov_b32 s{sOUT}, s20
    s_mov_b32 s{sOUT+1}, s21
    s_mov_b32 s{sOUT+2}, 2097152
    s_mov_b32 s{sOUT+3}, 0x20000
    s_waitcnt lgkmcnt(0)
    s_barrier
    ''')
    k.pt('b7')
    for p in range(3):
        for dt in range(4):
            e(f'ds_read_b128 {vr(RD+16*p+4*dt,4)}, v{vT+4+p} offset:{dt*1024}', tag=('r', p))
    e(f'ds_read_b32 v{vGO}, v{vT}', tag=('r', 3))
    k.wait(lg=('r', 0))
    for dt in range(4):
        e(f'ds_read_b128 {vr(RD+48+4*dt,4)}, v{vT+2} offset:{dt*1024}', tag=('r', 3))
    for p in range(3):
        k.wait(lg=('r', p))
        for i in range(0, 16, 2): e(f'v_pk_add_f32 {vr(OWN+i,2)}, {vr(OWN+i,2)}, {vr(RD+16*p+i,2)}')
    k.wait(lg=('r', 3))
    for i in range(0, 16, 2): e(f'v_pk_fma_f32 {vr(OWN+i,2)}, {vr(OWN+i,2)}, {vr(vGO,2)}, {vr(RD+48+i,2)} op_sel_hi:[1,0,1]')
    for dt in range(4):
        for h in range(2): e(f'v_cvt_pk_bf16_f32 v{RD+2*dt+h}, v{OWN+4*dt+2*h}, v{OWN+4*dt+2*h+1}')
    for h in range(2):
        e(f'v_permlane32_swap_b32 v{RD+h}, v{RD+4+h}')
        e(f'v_permlane32_swap_b32 v{RD+2+h}, v{RD+6+h}')
    for h in range(2):
        e(f'v_permlane16_swap_b32 v{RD+h}, v{RD+2+h}')
        e(f'v_permlane16_swap_b32 v{RD+4+h}, v{RD+6+h}')
    e(f'buffer_store_dwordx4 {vr(RD,4)}, v{vT+3}, s[{sOUT}:{sOUT+3}], s10 offen')
    e(f'buffer_store_dwordx4 {vr(RD+4,4)}, v{vT+3}, s[{sOUT}:{sOUT+3}], s10 offen offset:16')
    k.dump_stamps(sWS, sW, 0xF00000, 16)
    e('s_endpgm')
    k.raw('PK_A:')
    k.vm = []; k.lg = []
    FI = 84; ZF = 148; TM = 212
    vB, vTH0 = vT+2, vT+3
    e(f'''
    s_setprio 0
    s_lshl_b32 s10, s{sWA}, 3
    v_add_u32 v{TM}, s10, v{vL}
    v_mov_b32 v{TM+1}, s{sMT}
    v_cmp_gt_u32 vcc, 8, v{vL}
    v_cndmask_b32 v{TM}, v{TM+1}, v{TM}, vcc
    v_lshrrev_b32 v{TM+1}, 2, v{TM}
    v_and_b32 v{TM}, 3, v{TM}
    v_lshlrev_b32 v{TM}, 7, v{TM}
    v_lshl_add_u32 v{vT+5}, v{TM+1}, 12, v{TM}
    s_mov_b32 s66, {OFF_FM + 28*128}
    buffer_load_dwordx2 {vr(TM+2,2)}, v{vT+5}, s[{sWS}:{sWS+3}], s66 offen sc1
    v_and_b32 v{vT+7}, 0xf0, v{vLO}
    v_lshrrev_b32 v{vT+4}, 4, v{vL}
    v_lshlrev_b32 v{vT+4}, 15, v{vT+4}
    v_add_u32 v{vT+4}, v{vT+4}, v{vT+7}
    s_lshl_b32 s61, s{sWA}, 19
    s_lshl_b32 s62, s{sMT}, 8
    s_add_u32 s61, s61, s62
    s_add_u32 s61, s61, {OFF_Z}
    s_add_u32 s62, s62, {OFF_G}
    ''')
    count_m('A', TM)
    e('s_setprio 3')
    k.pt('A1')
    poll('PK_ZP', vT+5, 66, TM+2, slp, 67, first=False)
    k.stamp(4); k.pt('A2')
    e(f'buffer_load_dwordx4 {vr(vG,4)}, v{vT+7}, s[{sWS}:{sWS+3}], s62 offen sc1', tag='g')
    for st in range(4):
        for i in range(4):
            e(f'buffer_load_dwordx4 {vr(ZF+16*st+4*i,4)}, v{vT+4}, s[{sWS}:{sWS+3}], s61 offen sc1', tag=('z', st))
            if not (st == 3 and i == 3): e(f's_add_u32 s61, s61, {8192 if i < 3 else 8192*13}')
    k.pt('A3')
    e('s_setprio 0')
    e(f'''
    v_and_b32 v{vT}, 15, v{vL}
    s_lshl_b32 s10, s{sNT}, 6
    v_add_u32 v{vT}, s10, v{vT}
    v_cvt_f32_u32 v{vT}, v{vT}
    v_lshrrev_b32 v{vT+1}, 4, v{vL}
    v_lshlrev_b32 v{vT+1}, 2, v{vT+1}
    s_lshl_b32 s10, s{sWA}, 6
    v_add_u32 v{vT+1}, s10, v{vT+1}
    v_cvt_f32_u32 v{vT+1}, v{vT+1}
    ''')
    for dt in range(4):
        if dt == 0: e(f'v_mul_f32 v{vB}, {fl(1/512)}, v{vT}')
        else: e(f'v_add_f32 v{vB}, {fl(16/512)}, v{vB}')
        e(f'v_mul_f32 v{vTH0}, v{vB}, v{vT+1}')
        for st in range(4):
            angles(TM, vB, vTH0, [16*st+i for i in range(4)])
            for i in range(4): e(f'v_sin_f32 v{TM+4+i}, v{TM+i}')
            for i in range(4): e(f'v_cos_f32 v{TM+i}, v{TM+i}')
            for i in range(4): e(f'v_cvt_pk_bf16_f32 v{FI+16*st+4*dt+i}, v{TM+i}, -v{TM+4+i}')
    e(f'''
    s_cmp_lg_u32 s{sWA}, 0
    s_cbranch_scc1 PK_NOK0
    s_mov_b64 exec, 0xffff
    v_lshlrev_b32 v{TM}, 31, v{vL}
    v_or_b32 v{FI}, 0x3f003f00, v{TM}
    v_mov_b32 v{FI+4}, v{FI}
    v_mov_b32 v{FI+8}, v{FI}
    v_mov_b32 v{FI+12}, v{FI}
    s_mov_b64 exec, -1
    PK_NOK0:
    ''')
    k.stamp(5); k.pt('A4')
    lds_spin('PK_SPIN3', 12, 8, TM)
    gather_addr(AROW, vT+5)
    for st in range(4):
        k.wait(vm=('z', st))
        z = ZF + 16*st
        for i in range(4):
            for j in range(i+1, 4): e(f'v_swap_b32 v{z+4*i+j}, v{z+4*j+i}')
        for j in range(4):
            for dt in range(4):
                a = ACC + 16*j + 4*dt
                e(f'{M16} {vr(a,4)}, {vr(FI+16*st+4*dt,4)}, {vr(z+4*j,4)}, {"0" if st == 0 else vr(a,4)}')
    k.pt('A9')
    k.pad()
    scatter(AROW, 'A')
    e(f'''
    s_lshl_b32 s10, s{sWA}, 8
    s_add_u32 s10, s10, {L_SP}
    v_lshl_add_u32 v{vT}, v{vL}, 2, s10
    v_sub_f32 v{vT+2}, 1.0, v{vGO}
    ds_write_b32 v{vT}, v{vT+2}
    v_mul_f32 v{vGO}, {fl(2.0**-19)}, v{vGO}
    s_waitcnt lgkmcnt(0)
    ''')
    lds_inc(8, TM)
    lds_spin('PK_SPIN2', 8, 4, TM)
    for p in range(3):
        for dt in range(4):
            e(f'ds_read_b128 {vr(RD+16*p+4*dt,4)}, v{vT+5+p} offset:{dt*1024}', tag=('r', p))
    for p in range(3):
        k.wait(lg=('r', p))
        for i in range(0, 16, 2): e(f'v_pk_add_f32 {vr(OWN+i,2)}, {vr(OWN+i,2)}, {vr(RD+16*p+i,2)}')
    for dt in range(4):
        for h in (0, 2): e(f'v_pk_mul_f32 {vr(OWN+4*dt+h,2)}, {vr(OWN+4*dt+h,2)}, {vr(vGO,2)} op_sel_hi:[1,0]')
        e(f'ds_write_b128 v{vT+5}, {vr(OWN+4*dt,4)} offset:{dt*1024}')
    k.stamp(6); k.pt('A10')
    e('s_waitcnt lgkmcnt(0)')
    e('s_barrier')
    e(f'''
    s_or_b32 s10, s2, s{sW}
    s_cbranch_scc1 PK_NOEP
    s_mov_b32 s10, {OFF_EP}
    v_mov_b32 v{TM}, s{sN}
    s_mov_b64 exec, 1
    buffer_store_dword v{TM}, v{vZ}, s[{sWS}:{sWS+3}], s10 offen
    s_mov_b64 exec, -1
    PK_NOEP:
    ''')
    k.dump_stamps(sWS, sW, 0xF00000, 16)
    e('PK_END:\ns_endpgm')
    return k.text(), kdesc(name, 256, 102)
```

```python
import sys
from k1 import *
from k2 import *
from pk import gen_pk, PK_LDS
from pk3 import gen_pk3 as gen_pk2
HDR = open('gated_mix__spectral_gfnet__glu_gated_geglu__prompt.s.ref').read().split('; Override')[0]
def assemble(kernels, launches):
    s = HDR
    for l in launches: s += l + '\n'
    s += '.amdgcn_target "amdgcn-amd-amdhsa--gfx950"\n.text\n'
    for t, d in kernels: s += t
    s += '.section .rodata,"a"\n'
    for t, d in kernels: s += d
    if 'dft_tab' in s: s += gen_table()
    return s
def gen_empty():
    return '.globl em_kernel\n.p2align 8\n.type em_kernel,@function\nem_kernel:\ns_endpgm\n', kdesc('em_kernel', 8, 16)
def gen_spin(off):
    t = f'''.globl sp_kernel
.p2align 8
.type sp_kernel,@function
sp_kernel:
s_cmp_ge_u32 s2, 1
s_cbranch_scc1 SP_END
s_load_dwordx2 s[4:5], s[0:1], 80
s_waitcnt lgkmcnt(0)
s_add_u32 s4, s4, {off}
s_addc_u32 s5, s5, 0
s_load_dword s6, s[4:5], 0
s_waitcnt lgkmcnt(0)
SP_L:
s_memrealtime s[8:9]
s_waitcnt lgkmcnt(0)
s_sub_u32 s10, s8, s6
s_cmp_lt_u32 s10, 10000
s_cbranch_scc1 SP_L
SP_END:
s_endpgm
'''
    return t, kdesc('sp_kernel', 8, 16)
if __name__ == '__main__':
    DIAG = 'cyc' if 'cyc' in sys.argv else ('diag' in sys.argv)
    for a in sys.argv:
        if a.startswith('both='): DIAG = tuple(int(c) for c in a[5:])
    DEPTH = 12
    for a in sys.argv:
        if a.startswith('depth='): DEPTH = int(a[6:])
    PTS = None; OPT = ()
    for a in sys.argv:
        if a.startswith('pts='): PTS = a[4:].split(','); DIAG = 'cyc'
        if a.startswith('opt='): OPT = tuple(a[4:].split(','))
    var = sys.argv[2] if len(sys.argv) > 2 else 'k3'
    L1 = f'; @launch kernel=k1_kernel grid=(256,1,1) block=(512,1,1) lds={K1_LDS}'
    if var == 'k1':
        ks = [gen_k1(diag=DIAG, pts=PTS, opt=OPT)]; ls = [L1]
    elif var == 'k3':
        ks = [gen_k1(diag=DIAG, pts=PTS, opt=OPT), gen_k2('kf_kernel', 'fft'), gen_k2('kg_kernel', 'g2', diag=DIAG)]
        ls = [L1, '; @launch kernel=kf_kernel grid=(256,1,1) block=(256,1,1) lds=16384',
              f'; @launch kernel=kg_kernel grid=(256,1,1) block=(512,1,1) lds={K2_LDS}']
    elif var == 'k2':
        ks = [gen_k1(diag=DIAG, pts=PTS, opt=OPT), gen_k2('k2_kernel', 'merged', diag=DIAG, ahead=DEPTH)]
        ls = [L1, f'; @launch kernel=k2_kernel grid=(256,1,1) block=(512,1,1) lds={K2_LDS}']
    elif var in ('pk', 'pkl', 'pk2', 'pk2l'):
        nm = 'gated_mix__spectral_gfnet__glu_gated_geglu__prompt_kernel'
        ks = [(gen_pk2 if '2' in var else gen_pk)(nm, diag=DIAG, pts=PTS, opt=OPT, ahead=DEPTH)]
        ls = [f'; @launch grid=(256,1,1) block=(512,1,1) lds={PK_LDS}'] if not var.endswith('l') else [f'; @launch kernel={nm} grid=(256,1,1) block=(512,1,1) lds={PK_LDS}']
    for a in sys.argv:
        if a.startswith('spin='):
            ks.append(gen_spin(int(a[5:], 0))); ls.append('; @launch kernel=sp_kernel grid=(1,1,1) block=(64,1,1) lds=0')
        if a == 'empty_first':
            ks.append(gen_empty()); ls.insert(0, '; @launch kernel=em_kernel grid=(256,1,1) block=(64,1,1) lds=0')
        if a == 'empty_last':
            ks.append(gen_empty()); ls.append('; @launch kernel=em_kernel grid=(256,1,1) block=(64,1,1) lds=0')
    open(sys.argv[1], 'w').write(assemble(ks, ls))
```
